```python
import torch

def _softmax(x, axis=-1):
    return torch.softmax(x, dim=axis)
def _gelu(x):
    return torch.nn.functional.gelu(x, approximate="tanh")
def _silu(x):
    return torch.nn.functional.silu(x)
def _sigmoid(x):
    return torch.sigmoid(x)
def _layernorm(x, axis=-1, eps=1e-5):
    m = x.mean(dim=axis, keepdim=True)
    v = x.var(dim=axis, keepdim=True, unbiased=False)
    return (x - m) / torch.sqrt(v + eps)
def _scatter_add(tgt, idx, src, axis=0):
    return tgt.clone().index_add_(axis, idx, src)
def _segment_sum(src, seg, n):
    out = torch.zeros((n,) + src.shape[1:], dtype=src.dtype)
    return out.index_add_(0, seg, src)
def _pad(x, pw):
    flat = tuple(v for pair in reversed(pw) for v in pair)
    return torch.nn.functional.pad(x, flat)

kernel_name = 'recurrent_scan__linear_kernel_hedgehog__geglu_ffn__prompt'

def setup_inputs():

    _w = (lambda a: (lambda t: t.to(torch.bfloat16) if t.is_floating_point() else t)(torch.as_tensor(a)))
    def _A_setup():
        B, S, D, H = 1, 2048, 512, 32
        Dh = D // H
        return {
            "x": _w((lambda *s: torch.randn(*s, dtype=torch.bfloat16) * 0.05)(B, S, D)),
            "wqkv": _w((lambda *s: torch.randn(*s, dtype=torch.bfloat16) * 0.2)(D, 3 * D)),
            "w_phi": _w((lambda *s: torch.randn(*s, dtype=torch.bfloat16) * 0.2)(H, Dh, Dh) * (Dh ** -0.5)),
            "wo": _w((lambda *s: torch.randn(*s, dtype=torch.bfloat16) * 0.05)(D, D)),
        }
    _A_in = _A_setup()

    def _B_setup():
        B, S, D, F = 1, 2048, 512, 1376
        return {
            "x": _w((lambda *s: torch.randn(*s, dtype=torch.bfloat16) * 0.05)(B, S, D)),
            "w_gate": _w((lambda *s: torch.randn(*s, dtype=torch.bfloat16) * 0.05)(D, F)),
            "w_up": _w((lambda *s: torch.randn(*s, dtype=torch.bfloat16) * 0.05)(D, F)),
            "w_down": _w((lambda *s: torch.randn(*s, dtype=torch.bfloat16) * 0.05)(F, D)),
        }
    _B_in = _B_setup()

    return {
        "A_x": _A_in["x"],
        "A_wqkv": _A_in["wqkv"],
        "A_w_phi": _A_in["w_phi"],
        "A_wo": _A_in["wo"],
        "B_x": _B_in["x"],
        "B_w_gate": _B_in["w_gate"],
        "B_w_up": _B_in["w_up"],
        "B_w_down": _B_in["w_down"],
    }

def reference(A_x, A_wqkv, A_w_phi, A_wo, B_x, B_w_gate, B_w_up, B_w_down):
    def _A_ref(x, wqkv, w_phi, wo):
        B, S, D = x.shape
        H = 32; Dh = D // H
        qkv = (lambda x, *d: x.permute(*d))((x @ wqkv).reshape(B, S, 3, H, Dh), 2, 0, 3, 1, 4)
        q, k, v = qkv[0], qkv[1], qkv[2]
        pq = torch.einsum("bhsd,hdf->bhsf", q, w_phi)
        pk = torch.einsum("bhsd,hdf->bhsf", k, w_phi)
        phi_q = torch.concatenate([_softmax(pq, axis=-1), _softmax(-pq, axis=-1)], axis=-1)
        phi_k = torch.concatenate([_softmax(pk, axis=-1), _softmax(-pk, axis=-1)], axis=-1)
        kv = torch.einsum("bhsf,bhsd->bhfd", phi_k, v)
        z  = torch.einsum("bhsf->bhf", phi_k)
        num = torch.einsum("bhqf,bhfd->bhqd", phi_q, kv)
        den = torch.einsum("bhqf,bhf->bhq", phi_q, z)[..., None] + 1e-6
        o = num / den
        return (lambda x, *d: x.permute(*d))(o, 0, 2, 1, 3).reshape(B, S, D) @ wo

    def _B_ref(x, w_gate, w_up, w_down):
        return (_gelu(x @ w_gate) * (x @ w_up)) @ w_down

    x = A_x
    xn = _layernorm(x, axis=-1)
    s = _A_ref(xn, A_wqkv, A_w_phi, A_wo)
    g = _silu(_B_ref(xn, B_w_gate, B_w_up, B_w_down))
    return x + s * g
```

```python
import re

TRANS = ('v_exp_f32', 'v_log_f32', 'v_rcp_f32', 'v_rsq_f32', 'v_sqrt_f32', 'v_sin_f32', 'v_cos_f32')
NO_DST_S = ('s_cmp', 's_waitcnt', 's_barrier', 's_nop', 's_branch', 's_cbranch', 's_endpgm', 's_setprio',
            's_sleep', 's_bitcmp')

_reg_re = re.compile(r'^(-)?(\|)?([vas])(\d+)(\|)?$')
_rng_re = re.compile(r'^(-)?([vas])\[(\d+):(\d+)\]$')


def parse_reg(tok):
    tok = tok.strip()
    if tok.startswith('abs(') and tok.endswith(')'):
        tok = tok[4:-1]
    if tok.startswith('-abs(') and tok.endswith(')'):
        tok = tok[5:-1]
    m = _reg_re.match(tok)
    if m:
        return [(m.group(3), int(m.group(4)))]
    m = _rng_re.match(tok)
    if m:
        return [(m.group(2), i) for i in range(int(m.group(3)), int(m.group(4)) + 1)]
    if tok in ('vcc', 'exec'):
        return [(tok, 0)]
    if tok in ('m0', 'scc'):
        return [(tok, 0)]
    return []


class Instr:
    def __init__(self, text, tag=None, opt=False, comment=None, untracked=False):
        self.text = text.strip()
        self.untracked = untracked
        self.tag = tag
        self.opt = opt
        self.comment = comment
        self.kind = None
        self.wr = []
        self.rd = []
        self.srcC = []
        self.srcAB = []
        self.passes = 0
        self.parse()

    def parse(self):
        t = self.text
        if t.endswith(':') and not t.startswith('@raw '):
            self.kind = 'label'
            self.mn = t
            return
        if t.startswith('@raw '):
            self.kind = 'raw'
            self.mn = t
            self.text = t[5:]
            return
        if t.startswith('@'):
            self.kind = 'pseudo'
            self.mn = t
            return
        sp = t.split(None, 1)
        mn = sp[0]
        self.mn = mn
        rest = sp[1] if len(sp) > 1 else ''
        rest = re.sub(r'\s+op_sel(_hi)?:\[[^\]]*\]', '', rest)
        rest = re.sub(r'\s+neg_(lo|hi):\[[^\]]*\]', '', rest)
        ops = [o.strip() for o in rest.split(',')] if rest else []
        mods = []
        if ops:
            last = ops[-1].split()
            if last:
                ops[-1] = last[0]
                mods = last[1:]
        self.ops = ops
        self.mods = mods
        R = [parse_reg(o) for o in ops]
        flat = lambda L: [r for x in L for r in x]
        if mn.startswith('v_mfma'):
            self.kind = 'mfma'
            self.passes = 8 if '32x32x16' in mn else (4 if '16x16x32' in mn else None)
            assert self.passes
            self.wr = R[0]
            self.srcAB = R[1] + R[2]
            self.srcC = R[3]
            self.rd = self.srcAB + self.srcC
        elif mn.startswith('v_permlane'):
            self.kind = 'valu'
            self.sub = 'permlane'
            self.wr = R[0] + R[1]
            self.rd = R[0] + R[1]
        elif mn.startswith('v_cmp'):
            self.kind = 'valu'
            self.wr = R[0]
            self.rd = flat(R[1:])
        elif mn.startswith('v_readfirstlane') or mn.startswith('v_readlane'):
            self.kind = 'valu'
            self.sub = 'readlane'
            self.wr = R[0]
            self.rd = flat(R[1:])
        elif mn.startswith('v_'):
            self.kind = 'valu'
            self.wr = R[0]
            self.rd = flat(R[1:])
            if mn.startswith(('v_fmac', 'v_dot2c', 'v_pk_fmac')):
                self.rd = self.rd + R[0]
            if mn.startswith(('v_add_co', 'v_addc_co', 'v_sub_co')):
                self.wr = R[0] + R[1]
                self.rd = flat(R[2:])
            if mn.startswith('v_cndmask') and len(ops) == 3:
                self.rd = self.rd + [('vcc', 0)]
            if 'dpp' in mn:
                self.sub = 'dpp'
        elif mn.startswith('ds_read') or mn.startswith('ds_bpermute') or mn.startswith('ds_swizzle'):
            self.kind = 'ds'
            self.wr = R[0]
            self.rd = flat(R[1:])
        elif mn.startswith('ds_'):
            self.kind = 'ds'
            self.rd = flat(R)
        elif mn.startswith('buffer_load') or mn.startswith('global_load'):
            self.kind = 'vmem'
            if 'lds' in mods or '_lds_' in mn:
                self.rd = flat(R) + [('m0', 0)]
                self.dma = True
            else:
                self.wr = R[0]
                self.rd = flat(R[1:])
        elif mn.startswith('buffer_store') or mn.startswith('global_store'):
            self.kind = 'vmem'
            self.rd = flat(R)
            self.store = True
            if mn.startswith('buffer_store'):
                self.sdata = R[0]
            else:
                self.sdata = R[1]
        elif mn.startswith('buffer_atomic') or mn.startswith('global_atomic'):
            self.kind = 'vmem'
            self.rd = flat(R)
            self.store = True
            self.sdata = []
            if 'sc0' in mods:
                self.wr = R[0]
        elif mn.startswith('buffer_wbl2') or mn.startswith('buffer_inv'):
            self.kind = 'vmem'
        elif mn.startswith('s_load') or mn.startswith('s_memrealtime') or mn.startswith('s_memtime'):
            self.kind = 'smem'
            self.wr = R[0]
            self.rd = flat(R[1:])
        elif mn.startswith('s_'):
            self.kind = 'salu'
            if mn.startswith(NO_DST_S):
                self.rd = flat(R)
            else:
                self.wr = R[0]
                self.rd = flat(R[1:])
                if mn.startswith('s_and_saveexec'):
                    self.wr = self.wr + [('exec', 0)]
        else:
            raise ValueError('unknown instr ' + t)
        if not hasattr(self, 'sub'):
            self.sub = None
        self.is_trans = mn.replace('_e32', '').replace('_e64', '') in TRANS


class Stream:
    def __init__(self):
        self.ins = []

    def __call__(self, text, tag=None, opt=False, untracked=False):
        for line in text.strip().split('\n'):
            line = line.split(';')[0].strip()
            if line:
                self.ins.append(Instr(line, tag=tag, opt=opt, untracked=untracked))
        return self

    def wait_vm(self, tag):
        i = Instr('@wait_vm')
        i.tag = tag
        self.ins.append(i)

    def wait_lg0(self):
        self.ins.append(Instr('@wait_lg0'))

    def wait_vm0(self):
        self.ins.append(Instr('@wait_vm0'))

    def fence(self):
        self.ins.append(Instr('@fence'))

    def drain(self):
        self.ins.append(Instr('@drain'))

    def group(self, sub):
        i = Instr('@group')
        i.kind = 'group'
        i.sub_ins = list(sub.ins)
        self.ins.append(i)

    def gap(self, n):
        i = Instr('@gap')
        i.n = n
        self.ins.append(i)

    def extend(self, other):
        self.ins.extend(other.ins if isinstance(other, Stream) else other)

    def __len__(self):
        return len(self.ins)


def merge(main, side, key=lambda i: i.kind in ('mfma', 'mfma_dummy'), start=0, end_margin=0):
    main = main.ins if isinstance(main, Stream) else main
    side = side.ins if isinstance(side, Stream) else side
    keys = [n for n, i in enumerate(main) if key(i)]
    keys = keys[start:len(keys) - end_margin] if end_margin else keys[start:]
    nk = len(keys)
    real = [i for i in side if not (i.kind == 'pseudo' and i.mn == '@gap')]
    if nk == 0:
        return list(main) + real
    gaps = sum(i.n for i in side if i.kind == 'pseudo' and i.mn == '@gap')
    per = max(1, -(-len(real) // max(1, nk - gaps)))
    out = []
    pos = 0
    hold = 0
    kset = set(keys)
    for n, i in enumerate(main):
        out.append(i)
        if n in kset:
            if hold > 0:
                hold -= 1
                if hold > 0:
                    continue
            cnt = 0
            while pos < len(side) and cnt < per:
                x = side[pos]
                if x.kind == 'pseudo' and x.mn == '@gap':
                    pos += 1
                    hold = x.n
                    break
                out.append(x)
                pos += 1
                cnt += 1
    out.extend(i for i in side[pos:] if not (i.kind == 'pseudo' and i.mn == '@gap'))
    return out


def finalize(ins, verbose=False):
    flat = []
    for I in ins:
        if I.kind == 'group':
            flat.extend(I.sub_ins)
        else:
            flat.append(I)
    ins = flat
    out = []
    now = 0
    valu_w = {}
    trans_w = {}
    mfma_w = {}
    mfma_c = {}
    valu_sw = {}
    salu_m0 = [-100]
    store_d = {}
    dl_w = {}
    lg = []
    vm = []
    smem_pending = [False]
    stats = dict(nops=0, waits=0)

    def emit(text, states=1):
        nonlocal now
        out.append(text)
        now += states

    def do_wait(vmn=None, lgn=None):
        parts = []
        if vmn is not None:
            vmn = min(vmn, 63)
            if len(vm) > vmn:
                parts.append('vmcnt(%d)' % vmn)
                del vm[:len(vm) - vmn]
        if lgn is not None:
            lgn = min(lgn, 15)
            if len(lg) > lgn or (lgn == 0 and smem_pending[0]):
                parts.append('lgkmcnt(%d)' % lgn)
                del lg[:len(lg) - lgn]
                if lgn == 0:
                    smem_pending[0] = False
        if parts:
            emit('s_waitcnt ' + ' '.join(parts))
            stats['waits'] += 1

    def nop(n):
        while n > 0:
            k = min(n, 16)
            emit('s_nop %d' % (k - 1), k)
            stats['nops'] += 1
            n -= k

    for I in ins:
        if I.kind == 'label':
            out.append(I.text)
            continue
        if I.kind == 'raw':
            out.append('    ' + I.text)
            continue
        if I.kind == 'mfma_dummy':
            emit('    s_nop 0')
            continue
        if I.kind == 'pseudo':
            if I.mn == '@wait_vm':
                idx = None
                for n in range(len(vm) - 1, -1, -1):
                    if vm[n][1] == I.tag:
                        idx = n
                        break
                if idx is not None:
                    do_wait(vmn=len(vm) - 1 - idx)
            elif I.mn == '@wait_lg0':
                do_wait(lgn=0)
            elif I.mn == '@wait_vm0':
                do_wait(vmn=0)
            elif I.mn == '@drain':
                do_wait(vmn=0, lgn=0)
            elif I.mn == '@gap':
                pass
            elif I.mn == '@fence':
                need = 0
                for r, (t, p, d) in mfma_w.items():
                    need = max(need, t + (12 if p == 8 else 8) - now + 1)
                for r, t in valu_w.items():
                    need = max(need, t + 2 - now + 1)
                for r, t in valu_sw.items():
                    need = max(need, t + 5 - now + 1)
                for r, t in store_d.items():
                    need = max(need, t + 2 - now + 1)
                for r, t in dl_w.items():
                    need = max(need, t + 3 - now + 1)
                nop(need)
            continue
        touched = set(I.rd) | set(I.wr)
        need_lg = None
        for n, d in enumerate(lg):
            if d & touched:
                need_lg = len(lg) - 1 - n
        need_vm = None
        for n, (d, tg) in enumerate(vm):
            if d & touched:
                need_vm = len(vm) - 1 - n
        if smem_pending[0] and I.kind != 'smem' and any(r[0] == 's' for r in I.rd) and getattr(I, 'need_smem', False):
            need_lg = 0
        if need_lg is not None or need_vm is not None:
            do_wait(vmn=need_vm, lgn=need_lg)
        need = 0

        def req(t, n):
            nonlocal need
            need = max(need, n - (now - t - 1))

        if I.kind == 'mfma':
            for r in I.rd:
                if r in valu_w:
                    req(valu_w[r], 2)
            for r in I.srcAB:
                if r in mfma_w:
                    req(mfma_w[r][0], 12 if mfma_w[r][1] == 8 else 8)
            dt = tuple(I.wr)
            for r in I.srcC:
                if r in mfma_w:
                    t, p, d = mfma_w[r]
                    if d == tuple(I.srcC) and p == I.passes:
                        pass
                    else:
                        req(t, 10 if p == 8 else 6)
            if not I.srcC:
                for r in I.wr:
                    if r in mfma_w:
                        t, p, d = mfma_w[r]
                        req(t, 12 if p == 8 else 8)
                    if r in mfma_c:
                        t, p = mfma_c[r]
                        req(t, 7 if p == 8 else 3)
                    if r in valu_w:
                        req(valu_w[r], 2)
        elif I.kind == 'valu':
            for r in touched:
                if r in mfma_w:
                    req(mfma_w[r][0], 12 if mfma_w[r][1] == 8 else 8)
            for r in I.wr:
                if r in mfma_c:
                    t, p = mfma_c[r]
                    req(t, 7 if p == 8 else 3)
                if r in store_d:
                    req(store_d[r], 2)
            for r in I.rd:
                if r in trans_w:
                    req(trans_w[r], 1)
                if r in valu_sw:
                    req(valu_sw[r], 4 if I.sub == 'readlane' else 2)
                if I.sub in ('permlane', 'dpp') and r in valu_w:
                    req(valu_w[r], 2)
                if I.sub == 'readlane' and r in valu_w:
                    req(valu_w[r], 1)
        elif I.kind in ('vmem', 'ds'):
            for r in touched:
                if r in mfma_w:
                    req(mfma_w[r][0], 12 if mfma_w[r][1] == 8 else 8)
            for r in I.rd:
                if r in valu_sw:
                    req(valu_sw[r], 5)
                if r in trans_w:
                    req(trans_w[r], 1)
                if r == ('m0', 0):
                    req(salu_m0[0], 1)
            for r in I.wr:
                if r in mfma_c:
                    t, p = mfma_c[r]
                    req(t, 7 if p == 8 else 3)
                if r in store_d:
                    req(store_d[r], 2)
        elif I.kind in ('salu', 'smem'):
            for r in I.rd:
                if r in valu_sw:
                    req(valu_sw[r], 2)
        for r in touched:
            if r in dl_w:
                if I.mn.startswith('v_dot') and r in I.wr and I.rd.count(r) == 1:
                    continue
                req(dl_w[r], 3)
        if need > 0:
            nop(need)
        t = now
        emit('    ' + I.text, 0 if I.opt else 1)
        if I.kind == 'mfma':
            for r in I.wr:
                mfma_w[r] = (t, I.passes, tuple(I.wr))
                valu_w.pop(r, None)
                trans_w.pop(r, None)
            for r in I.srcC:
                mfma_c[r] = (t, I.passes)
        elif I.kind == 'valu':
            for r in I.wr:
                if I.mn.startswith('v_dot'):
                    dl_w[r] = t
                else:
                    dl_w.pop(r, None)
                if r[0] in ('v', 'a'):
                    valu_w[r] = t
                    mfma_w.pop(r, None)
                    if I.is_trans:
                        trans_w[r] = t
                    else:
                        trans_w.pop(r, None)
                else:
                    valu_sw[r] = t
        elif I.kind == 'ds':
            lg.append(set(I.wr))
            for r in I.wr:
                valu_w.pop(r, None)
                mfma_w.pop(r, None)
                trans_w.pop(r, None)
        elif I.kind == 'vmem':
            if not I.untracked:
                vm.append((set(I.wr), I.tag))
            for r in I.wr:
                valu_w.pop(r, None)
                mfma_w.pop(r, None)
                trans_w.pop(r, None)
            if getattr(I, 'store', False) and len(I.sdata) >= 3:
                for r in I.sdata:
                    store_d[r] = t
        elif I.kind == 'smem':
            smem_pending[0] = True
        elif I.kind == 'salu':
            for r in I.wr:
                valu_sw.pop(r, None)
                if r == ('m0', 0):
                    salu_m0[0] = t
            if I.mn == 's_waitcnt':
                m = re.search(r'vmcnt\((\d+)\)', I.text)
                if m:
                    n = int(m.group(1))
                    if len(vm) > n:
                        del vm[:len(vm) - n]
                m = re.search(r'lgkmcnt\((\d+)\)', I.text)
                if m:
                    n = int(m.group(1))
                    if len(lg) > n:
                        del lg[:len(lg) - n]
                    if n == 0:
                        smem_pending[0] = False
        assert len(vm) <= 63 + 64, 'too many vmem outstanding'
    if verbose:
        print('finalize:', stats, 'lines', len(out))
    return out
```

```python
import struct
import sys
import os
sys.path.insert(0, os.path.dirname(os.path.abspath(__file__)))
from asmdsl import Stream, Instr, merge, finalize


def f32(x):
    return '0x%08x' % struct.unpack('<I', struct.pack('<f', x))[0]


LOG2E = 1.4426950408889634
GK0 = -2.0 * 0.7978845608028654 * LOG2E
GK1 = GK0 * 0.044715

H_OFF = 0x000000
Q_OFF = 0x600000
KVP_OFF = 0x800000
WF_OFF = 0xA00000
O_OFF = 0xC00000
WS_SIZE = 0xF00000

TS_OFF = 0xE00000
STAMP = False
EXP = os.environ.get('EXP', '')


def stamp(S, idx):
    if STAMP and not (os.environ.get('STAMP') == '3' and idx not in (0, 8)):
        S('%s s[%d:%d]' % ('s_memtime' if os.environ.get('STAMP') == '2' else 's_memrealtime', 84 + 2 * idx, 85 + 2 * idx))


def stamp_flush(S, kern, n, SWS, sW, st, vt, lab):
    if not STAMP:
        return
    S('s_waitcnt lgkmcnt(0)')
    S('s_cmp_eq_u32 s%d, 0' % sW)
    S('s_cbranch_scc0 %s' % lab)
    S('s_lshl_b32 s%d, s2, 7' % (st + 2), opt=True)
    S('s_add_u32 s%d, s%d, %d' % (st + 2, st + 2, TS_OFF + kern * 256 * 128), opt=True)
    S('v_mov_b32 v%d, 0' % (vt + 2), opt=True)
    S('s_mov_b64 exec, 1', opt=True)
    for i in range(n):
        S('v_mov_b32 v%d, s%d' % (vt, 84 + 2 * i), opt=True)
        S('v_mov_b32 v%d, s%d' % (vt + 1, 85 + 2 * i), opt=True)
        S('buffer_store_dwordx2 v[%d:%d], v%d, s[%d:%d], s%d offen offset:%d' % (vt, vt + 1, vt + 2, SWS, SWS + 3, st + 2, 8 * i), opt=True, untracked=True)
        S('s_nop 1', opt=True)
    S('s_mov_b64 exec, -1', opt=True)
    S('%s:' % lab)


NAME = 'recurrent_scan__linear_kernel_hedgehog__geglu_ffn__prompt'


def vr(a, n=1):
    return 'v%d' % a if n == 1 else 'v[%d:%d]' % (a, a + n - 1)


def sr(a, n=1):
    return 's%d' % a if n == 1 else 's[%d:%d]' % (a, a + n - 1)


def make_srd(S, dst, ptr, size):
    S('s_mov_b32 s%d, s%d' % (dst, ptr))
    S('s_and_b32 s%d, s%d, 0xffff' % (dst + 1, ptr + 1))
    S('s_mov_b32 s%d, 0x%x' % (dst + 2, size))
    S('s_mov_b32 s%d, 0x00020000' % (dst + 3))


def xhalf(S, op, reg, tmp):
    S('v_mov_b32 v%d, v%d' % (tmp, reg))
    S('v_permlane32_swap_b32 v%d, v%d' % (reg, tmp))
    S('%s v%d, v%d, v%d' % (op, reg, reg, tmp))


def softmax8(S, T, P, t0):
    mx, t1, sm = t0, t0 + 1, t0 + 2
    S('v_max3_f32 v%d, v%d, v%d, v%d' % (mx, T, T + 1, T + 2))
    S('v_max3_f32 v%d, v%d, v%d, v%d' % (t1, T + 3, T + 4, T + 5))
    S('v_max3_f32 v%d, v%d, v%d, v%d' % (mx, mx, T + 6, T + 7))
    S('v_max_f32 v%d, v%d, v%d' % (mx, mx, t1))
    xhalf(S, 'v_max_f32', mx, t1)
    S('v_mul_f32 v%d, %s, v%d' % (mx, f32(-LOG2E), mx))
    S('v_mov_b32 v%d, %s' % (sm, f32(LOG2E)))
    for j in range(8):
        S('v_fma_f32 v%d, v%d, v%d, v%d' % (T + j, T + j, sm, mx))
    for j in range(8):
        S('v_exp_f32 v%d, v%d' % (T + j, T + j))
    S('v_add_f32 v%d, v%d, v%d' % (sm, T, T + 1))
    S('v_add_f32 v%d, v%d, v%d' % (t1, T + 2, T + 3))
    S('v_add_f32 v%d, v%d, v%d' % (sm, sm, T + 4))
    S('v_add_f32 v%d, v%d, v%d' % (t1, t1, T + 5))
    S('v_add_f32 v%d, v%d, v%d' % (sm, sm, T + 6))
    S('v_add_f32 v%d, v%d, v%d' % (t1, t1, T + 7))
    S('v_add_f32 v%d, v%d, v%d' % (sm, sm, t1))
    xhalf(S, 'v_add_f32', sm, t1)
    S('v_rcp_f32 v%d, v%d' % (sm, sm))
    for j in range(8):
        S('v_mul_f32 v%d, v%d, v%d' % (T + j, T + j, sm))
    for j in range(4):
        S('v_cvt_pk_bf16_f32 v%d, v%d, v%d' % (P + j, T + 2 * j, T + 2 * j + 1))


def gen_k1():
    S = Stream()
    SX, SWA, SWG, SWQ, SWS, SPH, SRL = 28, 32, 36, 40, 44, 48, 52
    sW, sRG, sC, sRB, sCG, sROT, sUA, sUB, sUC, sSTR = 56, 57, 58, 59, 60, 61, 62, 63, 64, 65
    sNH = 66
    sT = 68
    sFR = 80
    sHB = 81
    sCM = 26
    vL16, vA, vB, vK1 = 1, 2, 3, 4
    vOX0, vOX1, vOWA, vOG, vOQ = 5, 6, 7, 8, 9
    vXA = 10
    vWA = 14
    vCSR, vCSW = 18, 19
    vSX, vSXX = 20, 22
    vCA = 24
    vSEL = 28
    vLane = 0
    vPHI = vXA
    TMP = 32
    vCB = TMP
    vUP = TMP + 4
    sKX = 82
    sNZ = 20
    vFLG = 6
    WF = 64
    ACC = [80, 96, 112]
    X = 128
    SLOT = 32768
    PHIB = 131072
    VB = PHIB + 16384
    CS = VB + 8192
    CS2 = CS + 5120
    STX = CS2 + 1024
    KVT_OFF = KVP_OFF
    ONES = '0x3f803f80'

    S('s_load_dwordx16 s[4:19], s[0:1], 0')
    S('s_load_dwordx4 s[20:23], s[0:1], 64')
    S('s_load_dwordx2 s[24:25], s[0:1], 80')
    S('s_cmp_ge_u32 s2, 256')
    S('s_cbranch_scc1 K1_END')
    S('v_lshrrev_b32 v32, 6, v0')
    S('v_and_b32 v%d, 63, v0' % vLane)
    S('v_readfirstlane_b32 s%d, v32' % sW)
    S('v_lshlrev_b32 v%d, 4, v%d' % (vL16, vLane))
    S('s_and_b32 s%d, s%d, 3' % (sRG, sW))
    S('s_lshr_b32 s%d, s%d, 2' % (sC, sW))
    S('s_lshl_b32 s%d, s%d, 1' % (sKX, sC))
    S('s_xor_b32 s%d, s%d, s%d' % (sKX, sKX, sRG))
    S('s_and_b32 s%d, s2, 7' % sT)
    S('s_lshr_b32 s%d, s2, 3' % (sT + 1))
    S('s_and_b32 s%d, s%d, 7' % (sT + 2, sT + 1))
    S('s_lshr_b32 s%d, s%d, 3' % (sT + 3, sT + 1))
    S('s_and_b32 s%d, s%d, 1' % (sT + 4, sT))
    S('s_lshl_b32 s%d, s%d, 3' % (sT + 4, sT + 4))
    S('s_or_b32 s%d, s%d, s%d' % (sRB, sT + 4, sT + 2))
    S('s_lshr_b32 s%d, s%d, 1' % (sT + 4, sT))
    S('s_lshl_b32 s%d, s%d, 2' % (sT + 4, sT + 4))
    S('s_or_b32 s%d, s%d, s%d' % (sCG, sT + 4, sT + 3))
    S('s_lshl_b32 s%d, s%d, 1' % (sT + 4, sT + 3))
    S('s_add_u32 s%d, s%d, s%d' % (sT + 4, sT + 4, sT + 2))
    S('s_and_b32 s%d, s%d, 7' % (sROT, sT + 4))
    S('s_mul_i32 s%d, s%d, 3' % (sT, sCG))
    S('s_lshl_b32 s%d, s%d, 1' % (sT + 1, sCG))
    S('s_add_u32 s%d, s%d, 11' % (sT + 1, sT + 1))
    S('s_cmp_lt_u32 s%d, 11' % sCG)
    S('s_cselect_b32 s%d, s%d, s%d' % (sUA, sT, sT + 1))
    S('s_add_u32 s%d, s%d, 1' % (sUB, sUA))
    S('s_add_u32 s%d, s%d, 2' % (sT, sUA))
    S('s_cmp_lt_u32 s%d, 11' % sCG)
    S('s_cselect_b32 s%d, s%d, s%d' % (sUC, sT, sUB))
    m_, hi_ = TMP, TMP + 1
    t = [TMP + 2 + i for i in range(12)]
    S('v_and_b32 v%d, 31, v%d' % (m_, vLane))
    S('v_lshrrev_b32 v%d, 5, v%d' % (hi_, vLane))
    S('v_mov_b32 v%d, %s' % (vK1, f32(GK1)))
    S('s_waitcnt lgkmcnt(0)')
    make_srd(S, SX, 4, 2048 * 1024)
    make_srd(S, SWQ, 6, 512 * 3072)
    make_srd(S, SWS, 24, WS_SIZE)
    make_srd(S, SPH, 8, 32 * 512)
    S('s_cmp_eq_u32 s%d, 0' % sC)
    S('s_cselect_b32 s%d, s14, s16' % SWG)
    S('s_cselect_b32 s%d, s15, s17' % (SWG + 1))
    S('s_and_b32 s%d, s%d, 0xffff' % (SWG + 1, SWG + 1))
    S('s_mov_b32 s%d, %d' % (SWG + 2, 512 * 2752))
    S('s_mov_b32 s%d, 0x00020000' % (SWG + 3))
    S('s_lshr_b32 s%d, s%d, 1' % (sT, sW))
    S('s_cmp_eq_u32 s%d, 3' % sT)
    S('s_cselect_b32 s%d, s16, s14' % SWA)
    S('s_cselect_b32 s%d, s17, s15' % (SWA + 1))
    S('s_cmp_lt_u32 s%d, 2' % sT)
    S('s_cselect_b32 s%d, s6, s%d' % (SWA, SWA))
    S('s_cselect_b32 s%d, s7, s%d' % (SWA + 1, SWA + 1))
    S('s_mov_b32 s%d, %d' % (SWA + 2, 512 * 2752))
    S('s_cselect_b32 s%d, %d, s%d' % (SWA + 2, 512 * 3072, SWA + 2))
    S('s_mov_b32 s%d, 2752' % sSTR)
    S('s_cselect_b32 s%d, 3072, s%d' % (sSTR, sSTR))
    S('s_and_b32 s%d, s%d, 0xffff' % (SWA + 1, SWA + 1))
    S('s_mov_b32 s%d, 0x00020000' % (SWA + 3))
    S('s_lshl_b32 s%d, s%d, 6' % (sT + 1, sCG))
    S('s_lshl_b32 s%d, s%d, 10' % (sT + 2, sT))
    S('s_add_u32 s%d, s%d, 1024' % (sT + 2, sT + 2))
    S('s_add_u32 s%d, s%d, s%d' % (sT + 1, sT + 1, sT + 2))
    S('s_lshl_b32 s%d, s%d, 6' % (sT + 2, sUA))
    S('s_cmp_lt_u32 s%d, 2' % sT)
    S('s_cselect_b32 s%d, s%d, s%d' % (sT + 1, sT + 1, sT + 2))
    S('s_and_b32 s%d, s%d, 1' % (sT + 2, sW))
    S('s_lshl_b32 s%d, s%d, 5' % (sT + 2, sT + 2))
    S('v_lshrrev_b32 v%d, 2, v%d' % (t[0], vLane))
    S('v_add_u32 v%d, s%d, v%d' % (t[1], sT + 2, t[0]))
    S('v_mul_lo_u32 v%d, v%d, s%d' % (t[1], t[1], sSTR))
    S('s_and_b32 s%d, s%d, 1' % (sT + 2, sT))
    S('s_lshl_b32 s%d, s%d, 1' % (sT + 2, sT + 2))
    S('v_and_b32 v%d, 3, v%d' % (t[2], vLane))
    S('v_xor_b32 v%d, s%d, v%d' % (t[3], sT + 2, t[2]))
    S('v_lshl_add_u32 v%d, v%d, 4, v%d' % (t[1], t[3], t[1]))
    S('v_add_u32 v%d, s%d, v%d' % (vOWA, sT + 1, t[1]))
    S('s_lshl_b32 s%d, s%d, 1' % (sT + 2, sC))
    S('v_xor_b32 v%d, s%d, v%d' % (t[3], sT + 2, t[2]))
    S('v_mul_u32_u24 v%d, 2752, v%d' % (t[1], t[0]))
    S('v_lshl_add_u32 v%d, v%d, 4, v%d' % (vOG, t[3], t[1]))
    S('v_mul_u32_u24 v%d, 3072, v%d' % (t[1], t[0]))
    S('v_lshl_add_u32 v%d, v%d, 4, v%d' % (vOQ, t[2], t[1]))
    S('s_lshl_b32 s%d, s%d, 7' % (sT + 2, sRB))
    S('s_lshl_b32 s%d, s%d, 4' % (sT + 3, sW))
    S('s_add_u32 s%d, s%d, s%d' % (sT + 2, sT + 2, sT + 3))
    S('v_lshrrev_b32 v%d, 3, v%d' % (t[0], vLane))
    S('v_add_u32 v%d, s%d, v%d' % (t[0], sT + 2, t[0]))
    S('v_lshlrev_b32 v%d, 10, v%d' % (t[0], t[0]))
    S('v_and_b32 v%d, 7, v%d' % (t[1], vLane))
    S('v_lshrrev_b32 v%d, 4, v%d' % (t[2], vLane))
    S('v_xor_b32 v%d, v%d, v%d' % (t[3], t[1], t[2]))
    S('v_lshl_add_u32 v%d, v%d, 4, v%d' % (vOX0, t[3], t[0]))
    S('v_xor_b32 v%d, 4, v%d' % (t[3], t[3]))
    S('v_lshl_add_u32 v%d, v%d, 4, v%d' % (vOX1, t[3], t[0]))
    S('v_add_u32 v%d, %d, v%d' % (vOX1, 8 * 1024 - 1024, vOX1))

    sD = 83
    def dma_p1(s):
        slot = (s & 3) * SLOT
        tg = ('dma', s)
        P = [Stream() for _ in range(4)]
        S = P[0]
        S('s_add_u32 s%d, s%d, %d' % (sT, sROT, s))
        S('s_and_b32 s%d, s%d, 7' % (sD, sT))
        S('s_lshl_b32 s%d, s%d, 7' % (sT + 1, sD))
        S('s_lshl_b32 s%d, s%d, 11' % (sT + 2, sW))
        S('s_add_u32 m0, s%d, %d' % (sT + 2, slot))
        S('buffer_load_dwordx4 v%d, s[%d:%d], s%d offen lds' % (vOX0, SX, SX + 3, sT + 1), tag=tg)
        S = P[1]
        S('s_lshl_b32 s%d, s%d, 7' % (sT + 1, sD))
        S('s_lshl_b32 s%d, s%d, 11' % (sT + 2, sW))
        S('s_add_u32 m0, s%d, %d' % (sT + 2, slot))
        S('buffer_load_dwordx4 v%d, s[%d:%d], s%d offen offset:1024 lds' % (vOX1, SX, SX + 3, sT + 1), tag=tg)
        S = P[2]
        S('s_lshl_b32 s%d, s%d, 6' % (sD, sD))
        S('s_mul_i32 s%d, s%d, s%d' % (sD, sD, sSTR))
        S('s_lshl_b32 s%d, s%d, 11' % (sT + 2, sW))
        S('s_add_u32 m0, s%d, %d' % (sT + 2, slot + 16384))
        S('buffer_load_dwordx4 v%d, s[%d:%d], s%d offen lds' % (vOWA, SWA, SWA + 3, sD), tag=tg)
        S = P[3]
        S('s_lshl_b32 s%d, s%d, 4' % (sT + 1, sSTR))
        S('s_sub_u32 s%d, s%d, 1024' % (sT + 1, sT + 1))
        S('s_add_u32 s%d, s%d, s%d' % (sT + 1, sT + 1, sD))
        S('s_lshl_b32 s%d, s%d, 11' % (sT + 2, sW))
        S('s_add_u32 m0, s%d, %d' % (sT + 2, slot + 16384))
        S('buffer_load_dwordx4 v%d, s[%d:%d], s%d offen offset:1024 lds' % (vOWA, SWA, SWA + 3, sT + 1), tag=tg)
        return P

    def dma_strip(s, kcadd, stride, sU, vo, srd, wmask):
        slot = (s & 3) * SLOT
        tg = ('dma', s)
        P = [Stream() for _ in range(4)]
        S = P[0]
        if wmask:
            S('s_and_b32 s%d, s%d, %d' % (sT, sW, wmask))
            S('s_add_u32 s%d, s%d, s%d' % (sT, sT, sROT))
        else:
            S('s_add_u32 s%d, s%d, s%d' % (sT, sW, sROT))
        if kcadd:
            S('s_add_u32 s%d, s%d, %d' % (sT, sT, kcadd))
        S('s_and_b32 s%d, s%d, 7' % (sT, sT))
        S('s_mul_i32 s%d, s%d, %d' % (sD, sT, 64 * stride))
        S('s_lshl_b32 s%d, s%d, 6' % (sT + 1, sU))
        S('s_add_u32 s%d, s%d, s%d' % (sD, sD, sT + 1))
        for j in range(4):
            S = P[j]
            if j:
                S('s_add_u32 s%d, s%d, %d' % (sD, sD, 16 * stride - 1024))
            S('s_lshl_b32 s%d, s%d, 12' % (sT + 2, sW))
            S('s_add_u32 m0, s%d, %d' % (sT + 2, slot))
            S('buffer_load_dwordx4 v%d, s[%d:%d], s%d offen offset:%d lds' % (vo, srd, srd + 3, sD, 1024 * j), tag=tg)
        return P

    def dma(s):
        if 'nodma' in EXP or s > 12:
            return []
        if s < 8:
            return dma_p1(s)
        elif s < 10:
            return dma_strip(s, 4 * (s - 8), 2752, sUB, vOG, SWG, 3)
        elif s < 12:
            return dma_strip(s, 4 * (s - 10), 2752, sUC, vOG, SWG, 3)
        return dma_strip(s, 0, 3072, sCG, vOQ, SWQ, 0)

    stamp(S, 0)
    S('s_cmp_eq_u32 s%d, 0' % sRB)
    S('s_cbranch_scc0 K1_NOZERO')
    S('s_lshl_b32 s%d, s%d, 12' % (sT, sCG), opt=True)
    S('s_and_b32 s%d, s%d, 3' % (sT + 1, sW), opt=True)
    S('s_lshl_b32 s%d, s%d, 10' % (sT + 1, sT + 1), opt=True)
    S('s_add_u32 s%d, s%d, s%d' % (sT, sT, sT + 1), opt=True)
    S('s_lshl_b32 s%d, s%d, 16' % (sT + 1, sC), opt=True)
    S('s_add_u32 s%d, s%d, s%d' % (sT, sT, sT + 1), opt=True)
    S('s_add_u32 s%d, s%d, %d' % (sT, sT, KVT_OFF), opt=True)
    for r in range(4):
        S('v_mov_b32 v%d, 0' % (TMP + 8 + r), opt=True)
    S('buffer_store_dwordx4 %s, v%d, s[%d:%d], s%d offen sc1' % (vr(TMP + 8, 4), vL16, SWS, SWS + 3, sT), opt=True, untracked=True)
    S('K1_NOZERO:')
    for st in range(3):
        for pc in dma(st):
            S.extend(pc)

    RW = TMP + 16
    RR = TMP + 24
    S('v_and_b32 v%d, 3, v%d' % (t[0], vLane))
    S('v_bfe_u32 v%d, v%d, 2, 1' % (t[1], vLane))
    S('v_bfe_u32 v%d, v%d, 3, 1' % (t[2], vLane))
    S('v_lshl_or_b32 v%d, v%d, 3, v%d' % (t[0], t[1], t[0]))
    S('v_lshl_or_b32 v%d, v%d, 2, v%d' % (t[0], t[2], t[0]))
    S('v_lshlrev_b32 v%d, 1, v%d' % (t[0], t[0]))
    S('v_lshl_add_u32 v%d, v%d, 8, v%d' % (t[0], hi_, t[0]))
    S('s_lshl_b32 s%d, s%d, 1' % (sT, sCG))
    S('s_add_u32 s%d, s%d, s%d' % (sT, sT, sC))
    S('s_lshl_b32 s%d, s%d, 9' % (sT, sT))
    for jj in range(8):
        S('buffer_load_ushort v%d, v%d, s[%d:%d], s%d offen offset:%d' % (RW + jj, t[0], SPH, SPH + 3, sT, 32 * jj))
    S('s_lshl_b32 s%d, s2, 3' % sFR)
    S('s_add_u32 s%d, s%d, s%d' % (sFR, sFR, sW))
    S('s_min_u32 s%d, s%d, 1887' % (sFR, sFR))
    S('s_mul_hi_u32 s%d, s%d, %d' % (sT, sFR, (2 ** 32 + 85) // 86))
    S('s_mul_i32 s%d, s%d, 86' % (sT + 1, sT))
    S('s_sub_u32 s%d, s%d, s%d' % (sT + 1, sFR, sT + 1))
    S('s_sub_u32 s%d, s%d, 1376' % (sT + 2, sFR))
    S('s_lshr_b32 s%d, s%d, 5' % (sT + 3, sT + 2))
    S('s_and_b32 s%d, s%d, 31' % (sT + 2, sT + 2))
    S('s_cmp_lt_u32 s%d, 1376' % sFR)
    S('s_cselect_b32 s%d, s%d, s%d' % (sT, sT, sT + 3))
    S('s_cselect_b32 s%d, s%d, s%d' % (sT + 1, sT + 1, sT + 2))
    S('s_cselect_b32 s%d, s18, s10' % SRL)
    S('s_cselect_b32 s%d, s19, s11' % (SRL + 1))
    S('s_mov_b32 s%d, %d' % (SRL + 2, 512 * 1024))
    S('s_cselect_b32 s%d, %d, s%d' % (SRL + 2, 1376 * 1024, SRL + 2))
    S('s_and_b32 s%d, s%d, 0xffff' % (SRL + 1, SRL + 1))
    S('s_mov_b32 s%d, 0x00020000' % (SRL + 3))
    S('s_lshl_b32 s%d, s%d, 14' % (sT + 1, sT + 1))
    S('s_lshl_b32 s%d, s%d, 6' % (sT, sT))
    S('s_add_u32 s%d, s%d, s%d' % (sT, sT, sT + 1))
    S('v_and_b32 v%d, 3, v%d' % (t[0], vLane))
    S('v_bfe_u32 v%d, v%d, 2, 1' % (t[1], vLane))
    S('v_bfe_u32 v%d, v%d, 3, 2' % (t[2], vLane))
    S('v_lshl_or_b32 v%d, v%d, 4, v%d' % (t[0], t[1], t[0]))
    S('v_lshl_or_b32 v%d, v%d, 2, v%d' % (t[0], t[2], t[0]))
    S('v_lshlrev_b32 v%d, 1, v%d' % (t[0], t[0]))
    S('v_lshl_add_u32 v%d, v%d, 13, v%d' % (t[0], hi_, t[0]))
    S('v_add_u32 v%d, 4096, v%d' % (t[1], t[0]))
    for jj in range(8):
        S('buffer_load_ushort v%d, v%d, s[%d:%d], s%d offen offset:%d' % (
            RR + jj, t[0] if jj < 4 else t[1], SRL, SRL + 3, sT, 1024 * (jj & 3)))

    S('s_lshl_b32 s%d, s%d, 5' % (sT, sRG))
    S('v_add_u32 v%d, s%d, v%d' % (t[0], sT, m_))
    S('v_lshlrev_b32 v%d, 7, v%d' % (t[0], t[0]))
    S('v_bfe_u32 v%d, v%d, 1, 3' % (t[1], m_))
    S('v_xor_b32 v%d, v%d, v%d' % (t[1], t[1], hi_))
    S('s_lshl_b32 s%d, s%d, 1' % (sT + 1, sKX))
    S('v_xor_b32 v%d, s%d, v%d' % (t[1], sT + 1, t[1]))
    for j in range(4):
        S('v_xor_b32 v%d, %d, v%d' % (t[2], 2 * j, t[1]))
        S('v_lshl_add_u32 v%d, v%d, 4, v%d' % (vXA + j, t[2], t[0]))
    nh, r_, cgs = t[3], t[4], t[5]
    S('v_bfe_u32 v%d, v%d, 4, 1' % (nh, vLane))
    S('v_bfe_u32 v%d, v%d, 2, 2' % (r_, vLane))
    S('v_and_b32 v%d, 1, v%d' % (cgs, vLane))
    S('v_bfe_u32 v%d, v%d, 1, 1' % (t[6], vLane))
    S('v_lshl_or_b32 v%d, v%d, 1, v%d' % (cgs, cgs, t[6]))
    S('v_lshl_add_u32 v%d, v%d, 3, v%d' % (t[6], hi_, r_))
    S('v_lshlrev_b32 v%d, 6, v%d' % (t[6], t[6]))
    S('v_lshl_add_u32 v%d, v%d, 3, v%d' % (t[6], cgs, t[6]))
    S('v_xor_b32 v%d, s%d, v%d' % (t[7], sC, nh))
    S('v_lshl_add_u32 v%d, v%d, 5, v%d' % (t[7], t[7], t[6]))
    S('v_lshl_add_u32 v%d, v%d, 12, v%d' % (t[7], nh, t[7]))
    for j in range(4):
        S('s_xor_b32 s%d, s%d, %d' % (sT, sKX, j))
        S('s_lshl_b32 s%d, s%d, 10' % (sT, sT))
        S('v_add_u32 v%d, s%d, v%d' % (vWA + j, sT, t[7]))
    S('s_lshl_b32 s%d, s%d, 9' % (sT, sC))
    S('s_lshl_b32 s%d, s%d, 7' % (sT + 1, sRG))
    S('s_add_u32 s%d, s%d, s%d' % (sT, sT, sT + 1))
    S('s_add_u32 s%d, s%d, %d' % (sT, sT, CS))
    S('v_and_b32 v%d, 1, v%d' % (t[0], vLane))
    S('v_lshlrev_b32 v%d, 6, v%d' % (t[0], t[0]))
    S('v_lshrrev_b32 v%d, 4, v%d' % (t[1], vLane))
    S('v_lshl_add_u32 v%d, v%d, 4, v%d' % (t[0], t[1], t[0]))
    S('v_add_u32 v%d, s%d, v%d' % (vCSW, sT, t[0]))
    S('v_and_b32 v%d, 15, v%d' % (t[0], vLane))
    S('v_and_b32 v%d, 1, v%d' % (t[1], t[1]))
    S('v_cmp_eq_u32 vcc, v%d, v%d' % (t[0], t[1]))
    S('v_mov_b32 v%d, %s' % (t[2], ONES))
    for r in range(4):
        S('v_cndmask_b32 v%d, 0, v%d, vcc' % (vSEL + r, t[2]))
    S('s_lshl_b32 s%d, s%d, 7' % (sT, sW))
    S('s_add_u32 s%d, s%d, %d' % (sT, sT, CS2))
    S('v_lshl_add_u32 v%d, v%d, 4, s%d' % (vCSR, hi_, sT))
    for r in (vSX, vSX + 1, vSXX, vSXX + 1):
        S('v_mov_b32 v%d, 0' % r)
    S('s_mov_b32 s%d, 0x00030003' % sCM)
    S('s_mov_b32 s%d, 0x00030003' % (sCM + 1))
    S('s_lshr_b32 s%d, s%d, 1' % (sT, sRG))
    S('s_cmp_eq_u32 s%d, 1' % sT)
    S('s_cselect_b64 s[%d:%d], -1, 0' % (sNH, sNH + 1))
    S('s_not_b64 s[%d:%d], s[%d:%d]' % (sNZ, sNZ + 1, sNH, sNH + 1))
    S('s_lshl_b32 s%d, s%d, 2' % (sT, sRB))
    S('s_add_u32 s%d, s%d, s%d' % (sT, sT, sRG))
    S('s_mul_i32 s%d, s%d, 86' % (sHB, sT))
    S('s_add_u32 s%d, s%d, s%d' % (sHB, sHB, sC))
    S('s_lshl_b32 s%d, s%d, 10' % (sHB, sHB))

    items = []
    for s in range(8):
        for j in range(4):
            for u in range(2):
                items.append(dict(stage=s, xs=4 * s + j, j=j, off=16384 + 8192 * u, acc=ACC[u], first=(s == 0 and j == 0),
                                  cs=(vCA if u == 0 else vCB) if j == 0 else None, csfirst=(s == 0)))
    for ph, (acc, s0) in enumerate(((ACC[2], 8), (ACC[0], 10))):
        for hh in range(2):
            for q in range(4):
                for j in range(4):
                    items.append(dict(stage=s0 + hh, xs=(4 * hh + q) * 4 + j, j=j, off=q * 4096, acc=acc,
                                      first=(hh == 0 and q == 0 and j == 0), cs=vCA if j == 0 else None,
                                      csfirst=(hh == 0 and q == 0)))

    def item_reads(S, it, buf):
        if 'noread' in EXP:
            return
        slot = (it['stage'] & 3) * SLOT
        off = (slot & 0xffff) + it['off']
        for tt in range(2):
            S('ds_read_b64_tr_b16 v[%d:%d], v%d offset:%d' % (WF + 4 * buf + 2 * tt, WF + 4 * buf + 2 * tt + 1,
                                                               vWA + it['j'], off + 256 * tt))

    def item_mfma(S, it, buf):
        a = it['acc']
        c = '0' if it['first'] else vr(a, 16)
        if 'nomfma' not in EXP or it['first']:
            S('v_mfma_f32_32x32x16_bf16 %s, %s, %s, %s' % (vr(a, 16), vr(WF + 4 * buf, 4), vr(X + 4 * it['xs'], 4), c))
        else:
            S('s_nop 0')
            S.ins[-1].kind = 'mfma_dummy'
        if it['cs'] is not None and 'nodot' not in EXP:
            S('v_mfma_f32_16x16x32_bf16 %s, %s, %s, %s' % (vr(it['cs'], 4), vr(WF + 4 * buf, 4), vr(vSEL, 4),
                                                           '0' if it['csfirst'] else vr(it['cs'], 4)))

    def cs_flush(S, reg, unit, tmp=None):
        S('s_mov_b64 exec, s[%d:%d]' % (sCM, sCM + 1))
        S('ds_write_b128 v%d, %s offset:%d' % (vCSW, vr(reg, 4), 1024 * unit))
        S('s_mov_b64 exec, -1')

    def cs_total(E, unit, both=False):
        C = TMP
        E('v_and_b32 v%d, 31, v%d' % (C + 8, vLane))
        if both:
            E('v_lshlrev_b32 v%d, 2, v%d' % (C + 9, C + 8))
            E('v_add_u32 v%d, %d, v%d' % (C + 9, CS + 1024 * unit, C + 9))
        else:
            E('s_lshl_b32 s%d, s%d, 9' % (sT + 10, sC))
            E('s_add_u32 s%d, s%d, %d' % (sT + 10, sT + 10, CS + 1024 * unit))
            E('v_lshl_add_u32 v%d, v%d, 2, s%d' % (C + 9, C + 8, sT + 10))
        E('ds_read2_b32 v[%d:%d], v%d offset0:0 offset1:32' % (C, C + 1, C + 9))
        E('ds_read2_b32 v[%d:%d], v%d offset0:64 offset1:96' % (C + 2, C + 3, C + 9))
        if both:
            E('ds_read2_b32 v[%d:%d], v%d offset0:128 offset1:160' % (C + 4, C + 5, C + 9))
            E('ds_read2_b32 v[%d:%d], v%d offset0:192 offset1:224' % (C + 6, C + 7, C + 9))
        E('s_lshl_b32 s%d, s%d, 7' % (sT + 10, sW))
        E('s_add_u32 s%d, s%d, %d' % (sT + 10, sT + 10, CS2))
        E('v_lshl_add_u32 v%d, v%d, 2, s%d' % (C + 8, C + 8, sT + 10))
        E.gap(2)
        if both:
            for r in range(4):
                E('v_add_f32 v%d, v%d, v%d' % (C + r, C + r, C + 4 + r))
        E('v_add_f32 v%d, v%d, v%d' % (C, C, C + 1))
        E('v_add_f32 v%d, v%d, v%d' % (C + 2, C + 2, C + 3))
        E('v_add_f32 v%d, v%d, v%d' % (C, C, C + 2))
        E('ds_write_b32 v%d, v%d' % (C + 8, C))
    def normalize(E, A, unit, n=16, r0=0, csr=None):
        C = TMP
        cs_total(E, unit, both=(csr is not None))
        for i in range(r0 // 4, (r0 + n) // 4):
            E('ds_read_b128 v[%d:%d], v%d offset:%d' % (C + 4 * i, C + 4 * i + 3, vCSR, 32 * i))
        E.gap(2)
        for r in range(r0, r0 + n):
            E('v_mul_f32 v%d, v%d, v%d' % (C + r, C + r, vB))
            E('v_fma_f32 v%d, v%d, v%d, v%d' % (A + r, A + r, vA, C + r))

    def epi_kv():
        E = Stream()
        A = ACC[0]
        normalize(E, A, 0)
        KP, VP, T, w0 = TMP + 16, TMP + 20, TMP, TMP + 24
        for j in range(4):
            E('v_cvt_pk_bf16_f32 v%d, v%d, v%d' % (KP + j, A + 2 * j, A + 2 * j + 1))
        E('v_mfma_f32_32x32x16_bf16 %s, %s, %s, 0' % (vr(T, 16), vr(vPHI, 4), vr(KP, 4)))
        for j in range(4):
            E('v_cvt_pk_bf16_f32 v%d, v%d, v%d' % (VP + j, A + 8 + 2 * j, A + 8 + 2 * j + 1))
        E('v_and_b32 v%d, 31, v%d' % (w0, vLane))
        E('s_lshl_b32 s%d, s%d, 5' % (sT + 8, sRG))
        E('v_add_u32 v%d, s%d, v%d' % (w0, sT + 8, w0))
        E('v_lshrrev_b32 v%d, 5, v%d' % (w0 + 1, vLane))
        E('v_lshlrev_b32 v%d, 4, v%d' % (w0 + 1, w0 + 1))
        E('v_lshl_add_u32 v%d, v%d, 5, v%d' % (w0 + 2, w0, w0 + 1))
        E('s_lshl_b32 s%d, s%d, 12' % (sT + 8, sC))
        E('s_add_u32 s%d, s%d, %d' % (sT + 8, sT + 8, VB))
        E('v_add_u32 v%d, s%d, v%d' % (w0 + 2, sT + 8, w0 + 2))
        E('ds_write_b128 v%d, %s' % (w0 + 2, vr(VP, 4)))
        E('v_lshl_add_u32 v%d, v%d, 6, v%d' % (w0 + 2, w0, w0 + 1))
        E('s_lshl_b32 s%d, s%d, 13' % (sT + 8, sC))
        E('s_add_u32 s%d, s%d, %d' % (sT + 8, sT + 8, PHIB))
        E('v_add_u32 v%d, s%d, v%d' % (w0 + 3, sT + 8, w0 + 2))
        softmax8(E, T, KP, w0 + 4)
        E('ds_write_b128 v%d, %s' % (w0 + 3, vr(KP, 4)))
        softmax8(E, T + 8, VP, w0 + 4)
        E('ds_write_b128 v%d, %s offset:32' % (w0 + 3, vr(VP, 4)))
        return E

    def epi_kvmm():
        E = Stream()
        a_ad, b_ad, D, AF, BF = TMP, TMP + 1, TMP + 4, TMP + 8, TMP + 12
        w0 = TMP + 16
        E('v_lshrrev_b32 v%d, 4, v%d' % (w0, vLane))
        E('v_bfe_u32 v%d, v%d, 2, 2' % (w0 + 1, vLane))
        E('v_lshl_add_u32 v%d, v%d, 3, v%d' % (w0, w0, w0 + 1))
        E('v_and_b32 v%d, 3, v%d' % (w0 + 1, vLane))
        E('v_lshlrev_b32 v%d, 3, v%d' % (w0 + 1, w0 + 1))
        E('v_lshl_add_u32 v%d, v%d, 6, v%d' % (a_ad, w0, w0 + 1))
        E('v_lshl_add_u32 v%d, v%d, 5, v%d' % (b_ad, w0, w0 + 1))
        E('s_and_b32 s%d, s%d, 1' % (sT + 8, sRG))
        E('s_lshl_b32 s%d, s%d, 5' % (sT + 8, sT + 8))
        E('s_lshl_b32 s%d, s%d, 13' % (sT + 9, sC))
        E('s_add_u32 s%d, s%d, s%d' % (sT + 8, sT + 8, sT + 9))
        E('s_add_u32 s%d, s%d, %d' % (sT + 8, sT + 8, PHIB))
        E('v_add_u32 v%d, s%d, v%d' % (a_ad, sT + 8, a_ad))
        E('s_lshl_b32 s%d, s%d, 12' % (sT + 9, sC))
        E('s_add_u32 s%d, s%d, %d' % (sT + 9, sT + 9, VB))
        E('v_add_u32 v%d, s%d, v%d' % (b_ad, sT + 9, b_ad))
        E('v_mov_b32 v%d, %s' % (w0 + 2, ONES))
        for kb in range(4):
            af = AF if kb % 2 == 0 else w0 + 4
            bf = BF if kb % 2 == 0 else w0 + 8
            for tt in range(2):
                E('ds_read_b64_tr_b16 v[%d:%d], v%d offset:%d' % (af + 2 * tt, af + 2 * tt + 1, a_ad, (32 * kb + 4 * tt) * 64))
                E('ds_read_b64_tr_b16 v[%d:%d], v%d offset:%d' % (bf + 2 * tt, bf + 2 * tt + 1, b_ad, (32 * kb + 4 * tt) * 32))
            for r in range(4):
                E('v_cndmask_b32 v%d, v%d, v%d, s[%d:%d]' % (bf + r, bf + r, w0 + 2, sNH, sNH + 1))
            E('v_mfma_f32_16x16x32_bf16 %s, %s, %s, %s' % (vr(D, 4), vr(af, 4), vr(bf, 4), '0' if kb == 0 else vr(D, 4)))
        E('s_lshl_b32 s%d, s%d, 1' % (sT + 8, sCG))
        E('s_add_u32 s%d, s%d, s%d' % (sT + 8, sT + 8, sC))
        E('s_lshl_b32 s%d, s%d, 1' % (sT + 8, sT + 8))
        E('s_and_b32 s%d, s%d, 1' % (sT + 9, sRG))
        E('s_add_u32 s%d, s%d, s%d' % (sT + 8, sT + 8, sT + 9))
        E('s_lshl_b32 s%d, s%d, 10' % (sT + 8, sT + 8))
        E('s_lshr_b32 s%d, s%d, 1' % (sT + 9, sRG))
        E('s_lshl_b32 s%d, s%d, 16' % (sT + 9, sT + 9))
        E('s_add_u32 s%d, s%d, s%d' % (sT + 8, sT + 8, sT + 9))
        E('s_add_u32 s%d, s%d, %d' % (sT + 8, sT + 8, KVT_OFF))
        E('v_lshlrev_b32 v%d, 2, v%d' % (w0, vLane))
        G = Stream()
        G('v_readfirstlane_b32 s%d, v%d' % (sT + 9, vFLG))
        G('s_cmp_lg_u32 s%d, 0' % (sT + 9))
        G('s_cbranch_scc1 K1_FLAGOK')
        G('@raw s_mov_b32 s%d, 0' % (sT + 11))
        G('@raw K1_FLAGPOLL:')
        G('@raw global_load_dword v%d, v%d, s[22:23] sc1' % (w0 + 1, vFLG + 1))
        G('@raw s_waitcnt vmcnt(0)')
        G('@raw v_readfirstlane_b32 s%d, v%d' % (sT + 9, w0 + 1))
        G('@raw s_add_u32 s%d, s%d, 1' % (sT + 11, sT + 11))
        G('@raw s_nop 1')
        G('@raw s_cmp_lg_u32 s%d, 0' % (sT + 9))
        G('@raw s_cbranch_scc1 K1_FLAGOK')
        G('@raw s_cmp_lt_u32 s%d, 20000' % (sT + 11))
        G('@raw s_cbranch_scc1 K1_FLAGPOLL')
        G('@raw K1_FLAGOK:')
        G('s_mov_b32 s%d, 0x00010001' % (sT + 6))
        G('s_mov_b32 s%d, 0x00010001' % (sT + 7))
        G('s_or_b64 s[%d:%d], s[%d:%d], s[%d:%d]' % (sT + 6, sT + 7, sT + 6, sT + 7, sNZ, sNZ + 1))
        G('s_mov_b64 exec, s[%d:%d]' % (sT + 6, sT + 7))
        for r in range(4):
            G('buffer_atomic_add_f32 v%d, v%d, s[%d:%d], s%d offen offset:%d' % (D + r, w0, SWS, SWS + 3, sT + 8, 256 * r))
        G('s_mov_b64 exec, -1')
        E.group(G)
        return E

    def epi_gu(A, unit, sU):
        E = Stream()
        normalize(E, A, unit)
        T = TMP
        for j in range(8):
            E('v_mul_f32 v%d, v%d, v%d' % (T + j, A + j, A + j))
        for j in range(8):
            E('v_fmaak_f32 v%d, v%d, v%d, %s' % (T + j, T + j, vK1, f32(GK0)))
        for j in range(8):
            E('v_mul_f32 v%d, v%d, v%d' % (T + j, T + j, A + j))
        for j in range(8):
            E('v_exp_f32 v%d, v%d' % (T + j, T + j))
        for j in range(8):
            E('v_mul_f32 v%d, v%d, v%d' % (A + j, A + j, A + 8 + j))
        for j in range(8):
            E('v_add_f32 v%d, 1.0, v%d' % (T + j, T + j))
        for j in range(8):
            E('v_rcp_f32 v%d, v%d' % (T + j, T + j))
        for j in range(8):
            E('v_mul_f32 v%d, v%d, v%d' % (A + j, A + j, T + j))
        P = TMP + 8
        for j in range(4):
            E('v_cvt_pk_bf16_f32 v%d, v%d, v%d' % (P + j, A + 2 * j, A + 2 * j + 1))
        E('s_lshl_b32 s%d, s%d, 11' % (sT + 8, sU))
        E('s_add_u32 s%d, s%d, s%d' % (sT + 8, sT + 8, sHB))
        E('buffer_store_dwordx4 %s, v%d, s[%d:%d], s%d offen offset:%d' % (vr(P, 4), vL16, SWS, SWS + 3, sT + 8, H_OFF))
        return E

    def early_side():
        E = Stream()
        for j in range(4):
            E('v_lshl_or_b32 v%d, v%d, 16, v%d' % (TMP + 8 + j, RR + 2 * j + 1, RR + 2 * j))
        E('s_lshl_b32 s%d, s%d, 10' % (sT + 8, sFR))
        E('s_add_u32 s%d, s%d, %d' % (sT + 8, sT + 8, WF_OFF))
        E('buffer_store_dwordx4 %s, v%d, s[%d:%d], s%d offen' % (vr(TMP + 8, 4), vL16, SWS, SWS + 3, sT + 8))
        return E

    def stats_publish(E):
        E('v_add_f32 v%d, v%d, v%d' % (vSX, vSX, vSX + 1))
        E('v_add_f32 v%d, v%d, v%d' % (vSX + 1, vSXX, vSXX + 1))
        xhalf(E, 'v_add_f32', vSX, vOX0)
        xhalf(E, 'v_add_f32', vSX + 1, vOX1)
        E('v_and_b32 v%d, 31, v%d' % (vOX0, vLane))
        E('s_lshl_b32 s%d, s%d, 8' % (sT + 10, sW))
        E('s_add_u32 s%d, s%d, %d' % (sT + 10, sT + 10, STX))
        E('v_lshl_add_u32 v%d, v%d, 3, s%d' % (vOX0, vOX0, sT + 10))
        E('ds_write_b64 v%d, %s' % (vOX0, vr(vSX, 2)))

    def stats_final():
        E = Stream()
        t0 = TMP + 8
        E('v_and_b32 v%d, 31, v%d' % (t0, vLane))
        E('s_xor_b32 s%d, s%d, 4' % (sT + 10, sW))
        E('s_lshl_b32 s%d, s%d, 8' % (sT + 10, sT + 10))
        E('s_add_u32 s%d, s%d, %d' % (sT + 10, sT + 10, STX))
        E('v_lshl_add_u32 v%d, v%d, 3, s%d' % (t0, t0, sT + 10))
        E('ds_read_b64 %s, v%d' % (vr(vSXX, 2), t0))
        for j in range(4):
            E('v_lshl_or_b32 v%d, v%d, 16, v%d' % (vPHI + j, RW + 2 * j + 1, RW + 2 * j))
        E('v_bfe_u32 v%d, v%d, 4, 1' % (t0, vLane))
        E('v_mul_u32_u24 v%d, 0x8000, v%d' % (t0, t0))
        E('v_lshl_or_b32 v%d, v%d, 16, v%d' % (t0, t0, t0))
        for j in range(4):
            E('v_xor_b32 v%d, v%d, v%d' % (vPHI + j, vPHI + j, t0))
        E('v_add_f32 v%d, v%d, v%d' % (vSX, vSX, vSXX))
        E('v_add_f32 v%d, v%d, v%d' % (vSXX, vSX + 1, vSXX + 1))
        E('v_mul_f32 v%d, %s, v%d' % (vSX, f32(1.0 / 512), vSX))
        E('v_mul_f32 v%d, %s, v%d' % (vSXX, f32(1.0 / 512), vSXX))
        E('v_fma_f32 v%d, -v%d, v%d, v%d' % (vSXX, vSX, vSX, vSXX))
        E('v_max_f32 v%d, 0, v%d' % (vSXX, vSXX))
        E('v_cvt_pk_bf16_f32 v%d, v%d, v%d' % (t0, vSX, vSXX))
        E('v_lshlrev_b32 v%d, 16, v%d' % (vSX, t0))
        E('v_and_b32 v%d, 0xffff0000, v%d' % (vSXX, t0))
        E('v_add_f32 v%d, %s, v%d' % (vSXX, f32(1e-5), vSXX))
        E('v_cvt_pk_bf16_f32 v%d, v%d, v%d' % (t0, vSXX, vSXX))
        E('v_and_b32 v%d, 0xffff0000, v%d' % (vSXX, t0))
        E('v_sqrt_f32 v%d, v%d' % (vSXX, vSXX))
        E('v_cvt_pk_bf16_f32 v%d, v%d, v%d' % (t0, vSXX, vSXX))
        E('v_and_b32 v%d, 0xffff0000, v%d' % (vSXX, t0))
        E('v_rcp_f32 v%d, v%d' % (vA, vSXX))
        E('v_mul_f32 v%d, v%d, v%d' % (vB, vSX, vA))
        E('v_sub_f32 v%d, 0, v%d' % (vB, vB))
        return E

    D = 3
    nit = len(items)

    def stage_begin(S, s):
        if s == 2 or s == 4 or s == 6 or s == 8 or s == 10 or s == 12:
            pass
        S.wait_vm(('dma', s))
        S.wait_lg0()
        S('s_barrier')
        if s in (0, 2, 4, 8, 10):
            stamp(S, {0: 1, 2: 2, 4: 3, 8: 4, 10: 5}[s])
        if s > 0 and (s % 2 == 0):
            if s < 8:
                for j in range(4):
                    S('v_xor_b32 v%d, 0x10000, v%d' % (vXA + j, vXA + j))
            for j in range(4):
                S('v_xor_b32 v%d, 0x10000, v%d' % (vWA + j, vWA + j))
        if s == 0:
            S('s_cmp_eq_u32 s%d, 0' % sRB)
            S('s_cbranch_scc0 K1_NOFLAG')
            S('s_cmp_eq_u32 s%d, 0' % sW, opt=True)
            S('s_cbranch_scc0 K1_NOFLAG', opt=True)
            S('s_lshl_b32 s%d, s%d, 2' % (sT, sCG), opt=True)
            S('v_mov_b32 v%d, s%d' % (TMP + 8, sT), opt=True)
            S('v_mov_b32 v%d, 1' % (TMP + 9), opt=True)
            S('s_mov_b64 exec, 1', opt=True)
            S('global_atomic_add v%d, v%d, s[22:23] sc1' % (TMP + 8, TMP + 9), opt=True, untracked=True)
            S('s_mov_b64 exec, -1', opt=True)
            S('K1_NOFLAG:')
        if s == 8:
            S('v_bfe_u32 v%d, v%d, 4, 1' % (vOX0, vLane))
            S('v_mul_u32_u24 v%d, 12288, v%d' % (vOX0, vOX0))
            for j in range(4):
                S('v_add_u32 v%d, v%d, v%d' % (vWA + j, vWA + j, vOX0))
        if s < 8:
            slot = (s & 3) * SLOT
            for j in range(4):
                xs = 4 * s + j
                S('ds_read_b128 %s, v%d offset:%d' % (vr(X + 4 * xs, 4), vXA + j, slot & 0xffff))

    def stats_ops(E, xs):
        if 'nodot' in EXP:
            return
        for r in range(4):
            x = X + 4 * xs + r
            E('v_lshlrev_b32 v%d, 16, v%d' % (vUP, x))
            E('v_and_b32 v%d, 0xffff0000, v%d' % (vUP + 1, x))
            E('v_pk_add_f32 %s, %s, %s' % (vr(vSX, 2), vr(vSX, 2), vr(vUP, 2)))
            E('v_pk_fma_f32 %s, %s, %s, %s' % (vr(vSXX, 2), vr(vUP, 2), vr(vUP, 2), vr(vSXX, 2)))

    segs = {}
    cur = Stream()
    seg_list = [[-1, cur]]

    def new_seg(s):
        nonlocal cur
        cur = Stream()
        seg_list.append([s, cur])

    issued = 0
    last_stage = -1
    for n in range(nit + D):
        if n < nit:
            it = items[n]
            if it['stage'] != last_stage:
                st = it['stage']
                if st == 8:
                    cs_flush(cur, vCA, 0)
                    cs_flush(cur, vCB, 1)
                    stats_publish(cur)
                if st == 10:
                    cs_flush(cur, vCA, 2)
                new_seg(st)
                stage_begin(cur, st)
                last_stage = st
            item_reads(cur, it, n % 4)
        if n >= D:
            it2 = items[n - D]
            item_mfma(cur, it2, (n - D) % 4)
            if it2['stage'] < 8 and it2['off'] == 16384 and it2['j'] < 2:
                stats_ops(cur, it2['xs'])

    side = {s: Stream() for s in range(-1, 13)}
    side[5].extend(early_side())
    side[8].extend(stats_final())
    side[8].extend(epi_kv())
    side[9]('s_lshl_b32 s%d, s%d, 2' % (sT + 8, sCG))
    side[9]('v_mov_b32 v%d, s%d' % (vFLG + 1, sT + 8))
    side[9]('global_load_dword v%d, v%d, s[22:23] sc1' % (vFLG, vFLG + 1))
    side[9].extend(epi_gu(ACC[1], 1, sUA))
    g = epi_gu(ACC[2], 2, sUB)
    side[10].extend(epi_kvmm())
    side[10].extend(g.ins[:len(g) // 3])
    side[11].extend(g.ins[len(g) // 3:])

    if 'noside' in EXP:
        side = {s: Stream() for s in range(-1, 13)}

    def with_dma(seg, st):
        pcs = dma(st + 3) if st >= 0 else []
        if not pcs:
            return seg
        ins = seg.ins
        keys = [n for n, i in enumerate(ins) if i.kind in ('mfma', 'mfma_dummy') and '32x32' in i.text or i.kind == 'mfma_dummy']
        nk = len(keys)
        at = {keys[min(nk - 1, (q * nk) // 4 + 1)]: q for q in range(4)}
        out = Stream()
        for n, i in enumerate(ins):
            out.ins.append(i)
            if n in at:
                out.group(pcs[at[n]])
        return out

    for e in seg_list:
        e[1] = with_dma(e[1], e[0])
    for st, seg in seg_list:
        if st in (8, 10):
            S.extend(merge(seg, side[st], start=D + 1 if st == 8 else 0))
        elif st >= 0:
            S.extend(merge(seg, side[st]))
        else:
            S.extend(seg)

    cs_flush(S, vCA, 3)
    S.wait_vm(('dma', 12))
    S.wait_lg0()
    S('s_barrier')
    stamp(S, 6)
    m2, h2 = TMP + 24, TMP + 25
    w1, w2, w3 = TMP + 26, TMP + 27, TMP + 28
    S('v_bfe_u32 v%d, v%d, 2, 2' % (w1, vLane))
    S('v_lshrrev_b32 v%d, 5, v%d' % (h2, vLane))
    S('v_lshl_add_u32 v%d, v%d, 3, v%d' % (w1, h2, w1))
    S('v_lshlrev_b32 v%d, 6, v%d' % (w1, w1))
    S('v_and_b32 v%d, 1, v%d' % (w2, vLane))
    S('v_bfe_u32 v%d, v%d, 1, 1' % (w3, vLane))
    S('v_lshl_or_b32 v%d, v%d, 1, v%d' % (w2, w2, w3))
    S('v_lshl_add_u32 v%d, v%d, 3, v%d' % (w1, w2, w1))
    S('v_bfe_u32 v%d, v%d, 4, 1' % (w2, vLane))
    S('v_lshl_add_u32 v%d, v%d, 5, v%d' % (w1, w2, w1))
    S('s_lshl_b32 s%d, s%d, 14' % (sT + 1, sC))
    for j in range(4):
        S('s_xor_b32 s%d, s%d, %d' % (sT, sKX, j))
        S('s_lshl_b32 s%d, s%d, 10' % (sT, sT))
        S('s_add_u32 s%d, s%d, s%d' % (sT, sT, sT + 1))
        S('v_add_u32 v%d, s%d, v%d' % (vWA + j, sT, w1))
    S.wait_lg0()
    S.fence()
    S('s_cmp_eq_u32 s%d, 1' % sC)
    S('s_cbranch_scc1 K1_Q1')

    def q_variant(c):
        V = Stream()
        qa = ACC[1]
        qitems = []
        for q in range(4):
            for j in range(4):
                qitems.append(dict(stage=12, xs=(4 * c + q) * 4 + j, j=j, off=q * 4096, acc=qa,
                                   first=(q == 0 and j == 0), cs=vCA if j == 0 else None, csfirst=(q == 0)))
        M = Stream()
        for n in range(16 + D):
            if n < 16:
                item_reads(M, qitems[n], n % 4)
            if n >= D:
                item_mfma(M, qitems[n - D], (n - D) % 4)
        V.extend(merge(M, epi_gu(ACC[0], 3, sUC)))
        cs_flush(V, vCA, 4)
        keep, send = qa + 8 * c, qa + 8 * (1 - c)
        V('s_lshl_b32 s%d, s%d, 11' % (sT, sW))
        V('s_add_u32 s%d, s%d, %d' % (sT, sT, PHIB))
        V('v_add_u32 v%d, s%d, v%d' % (TMP + 21, sT, vL16))
        V('ds_write_b128 v%d, %s' % (TMP + 21, vr(send, 4)))
        V('ds_write_b128 v%d, %s offset:1024' % (TMP + 21, vr(send + 4, 4)))
        V.wait_lg0()
        V('s_barrier')
        V('s_xor_b32 s%d, s%d, 4' % (sT, sW))
        V('s_lshl_b32 s%d, s%d, 11' % (sT, sT))
        V('s_add_u32 s%d, s%d, %d' % (sT, sT, PHIB))
        V('v_add_u32 v%d, s%d, v%d' % (TMP + 21, sT, vL16))
        V('ds_read_b128 %s, v%d' % (vr(TMP + 24, 4), TMP + 21))
        V('ds_read_b128 %s, v%d offset:1024' % (vr(TMP + 28, 4), TMP + 21))
        for r in range(8):
            V('v_add_f32 v%d, v%d, v%d' % (keep + r, keep + r, TMP + 24 + r))
        normalize(V, qa, 4, n=8, r0=8 * c, csr=TMP + 20)
        for j in range(4):
            V('v_cvt_pk_bf16_f32 v%d, v%d, v%d' % (TMP + 24 + j, keep + 2 * j, keep + 2 * j + 1))
        V('s_lshl_b32 s%d, s%d, 1' % (sT, sCG))
        V('s_add_u32 s%d, s%d, %d' % (sT, sT, c))
        V('s_lshl_b32 s%d, s%d, 4' % (sT, sT))
        V('s_add_u32 s%d, s%d, s%d' % (sT, sT, sRB))
        V('s_lshl_b32 s%d, s%d, 2' % (sT, sT))
        V('s_add_u32 s%d, s%d, s%d' % (sT, sT, sRG))
        V('s_lshl_b32 s%d, s%d, 10' % (sT, sT))
        V('s_add_u32 s%d, s%d, %d' % (sT, sT, Q_OFF))
        V('buffer_store_dwordx4 %s, v%d, s[%d:%d], s%d offen' % (vr(TMP + 24, 4), vL16, SWS, SWS + 3, sT))
        stamp(V, 7)
        if STAMP:
            V('s_waitcnt vmcnt(0)')
        stamp(V, 8)
        stamp_flush(V, 0, 9, SWS, sW, sT, TMP, 'K1_SF%d' % c)
        V('s_endpgm')
        return V

    lines = finalize(S.ins, verbose=True)
    lines += finalize(q_variant(0).ins)
    lines.append('K1_Q1:')
    lines += finalize(q_variant(1).ins)
    lines.append('K1_END:')
    lines.append('    s_endpgm')
    return lines


def gen_k2():
    S = Stream()
    SWS, SX, SO, SPH = 28, 32, 36, 40
    sW, sXC, sI, sRB, sCT, sK0 = 44, 45, 46, 47, 48, 49
    sHA, sWA, sOA, sWO = 50, 51, 52, 53
    sT = 56
    vLane = 4
    vL16 = 1
    vHa, vHb, vWa, vWb = 160 + 0, 0, 0, 0
    ACC = 192
    NB = 11
    BUF = [96 + 16 * i for i in range(6)] + [16 + 16 * i for i in range(5)]
    RED = 0
    vHa, vHb, vWa, vWb = 2, 3, 5, 6
    vOa, vOb, vPa, vPb = 7, 8, 9, 10
    t = [11, 12, 13, 14, 15]

    S('s_load_dwordx16 s[4:19], s[0:1], 0')
    S('s_load_dwordx4 s[20:23], s[0:1], 64')
    S('s_load_dwordx2 s[24:25], s[0:1], 80')
    S('s_cmp_ge_u32 s2, 256')
    S('s_cbranch_scc1 K2_END')
    S('v_lshrrev_b32 v5, 6, v0')
    S('v_and_b32 v%d, 63, v0' % vLane)
    S('v_readfirstlane_b32 s%d, v5' % sW)
    S('v_lshlrev_b32 v%d, 4, v%d' % (vL16, vLane))
    S('s_and_b32 s%d, s2, 7' % sXC)
    S('s_lshr_b32 s%d, s2, 3' % sI)
    S('s_lshr_b32 s%d, s%d, 3' % (sT, sI))
    S('s_lshl_b32 s%d, s%d, 2' % (sRB, sXC))
    S('s_add_u32 s%d, s%d, s%d' % (sRB, sRB, sT))
    S('s_and_b32 s%d, s%d, 7' % (sCT, sI))
    S('s_lshl_b32 s%d, s%d, 1' % (sT, sT))
    S('s_add_u32 s%d, s%d, s%d' % (sT, sT, sCT))
    S('s_and_b32 s%d, s%d, 7' % (sT, sT))
    S('s_mul_i32 s%d, s%d, 11' % (sK0, sT))
    S('s_mul_i32 s%d, s%d, %d' % (sHA, sRB, 2 * 86 * 1024))
    S('s_mul_i32 s%d, s%d, %d' % (sWA, sCT, 2 * 86 * 1024))
    S('s_add_u32 s%d, s%d, %d' % (sWA, sWA, WF_OFF))
    S('s_lshl_b32 s%d, s%d, 16' % (sOA, sRB))
    S('s_add_u32 s%d, s%d, %d' % (sOA, sOA, O_OFF))
    S('s_lshl_b32 s%d, s%d, 16' % (sWO, sCT))
    S('s_add_u32 s%d, s%d, %d' % (sWO, sWO, WF_OFF + 1376 * 1024))
    S('s_lshr_b32 s%d, s%d, 1' % (sT, sW))
    S('s_and_b32 s%d, s%d, 1' % (sT + 1, sW))
    for (va, vb, sx, stride) in ((vHa, vHb, sT, 86 * 1024), (vWa, vWb, sT + 1, 86 * 1024),
                                 (vOa, vOb, sT, 32 * 1024), (vPa, vPb, sT + 1, 32 * 1024)):
        S('s_mul_i32 s%d, s%d, %d' % (sT + 2, sx, stride))
        S('s_sub_u32 s%d, %d, s%d' % (sT + 3, stride, sT + 2))
        S('v_add_u32 v%d, s%d, v%d' % (va, sT + 2, vL16))
        S('v_add_u32 v%d, s%d, v%d' % (vb, sT + 3, vL16))
    S('s_waitcnt lgkmcnt(0)')
    make_srd(S, SWS, 24, WS_SIZE)
    make_srd(S, SX, 4, 2048 * 1024)
    make_srd(S, SO, 20, 2048 * 1024)
    make_srd(S, SPH, 8, 32 * 512)
    stamp(S, 0)

    PP = 16
    QF = 80
    RW = 88
    S('v_and_b32 v%d, 3, v%d' % (t[0], vLane))
    S('v_bfe_u32 v%d, v%d, 2, 1' % (t[1], vLane))
    S('v_bfe_u32 v%d, v%d, 3, 1' % (t[2], vLane))
    S('v_lshl_or_b32 v%d, v%d, 3, v%d' % (t[0], t[1], t[0]))
    S('v_lshl_or_b32 v%d, v%d, 2, v%d' % (t[0], t[2], t[0]))
    S('v_lshlrev_b32 v%d, 2, v%d' % (t[0], t[0]))
    S('v_mov_b32 v%d, 0x10000' % t[1])
    S('v_and_b32 v%d, 16, v%d' % (t[2], vLane))
    S('v_cmp_eq_u32 vcc, 0, v%d' % t[2])
    S('v_cndmask_b32 v%d, v%d, v%d, vcc' % (t[0], t[1], t[0]))
    S('v_lshrrev_b32 v%d, 5, v%d' % (t[3], vLane))
    S('v_lshl_add_u32 v%d, v%d, 6, v%d' % (t[0], t[3], t[0]))
    S('s_lshl_b32 s%d, s%d, 11' % (sT, sI))
    S('s_add_u32 s%d, s%d, %d' % (sT, sT, KVP_OFF))
    for fh in range(2):
        for gs in range(2):
            for j in range(4):
                S('buffer_load_dword v%d, v%d, s[%d:%d], s%d offen offset:%d' % (PP + 8 * fh + 4 * gs + j, t[0], SWS, SWS + 3, sT,
                                                                                 1024 * fh + 128 * gs + 256 * j))
    S('s_lshl_b32 s%d, s%d, 6' % (sT, sI))
    S('s_lshl_b32 s%d, s%d, 3' % (sT + 1, sXC))
    S('s_add_u32 s%d, s%d, s%d' % (sT, sT, sT + 1))
    S('s_lshl_b32 s%d, s%d, 1' % (sT + 1, sW))
    S('s_add_u32 s%d, s%d, s%d' % (sT, sT, sT + 1))
    S('s_lshl_b32 s%d, s%d, 10' % (sT, sT))
    S('s_add_u32 s%d, s%d, %d' % (sT, sT, Q_OFF))
    for i in range(2):
        S('buffer_load_dwordx4 %s, v%d, s[%d:%d], s%d offen offset:%d' % (vr(QF + 4 * i, 4), vL16, SWS, SWS + 3, sT, 1024 * i))
    S('v_and_b32 v%d, 15, v%d' % (t[1], vLane))
    S('v_lshlrev_b32 v%d, 1, v%d' % (t[1], t[1]))
    S('v_lshl_add_u32 v%d, v%d, 8, v%d' % (t[1], t[3], t[1]))
    S('s_lshl_b32 s%d, s%d, 9' % (sT, sI))
    for jj in range(8):
        S('buffer_load_ushort v%d, v%d, s[%d:%d], s%d offen offset:%d' % (RW + jj, t[1], SPH, SPH + 3, sT, 32 * jj))

    NDS = 22
    NSS = 8

    def step_loads(S, tstep, which='all'):
        b = BUF[tstep % NB]
        if tstep < NDS:
            S('s_add_u32 s%d, s%d, %d' % (sT, sW, 4 * tstep))
            S('s_add_u32 s%d, s%d, s%d' % (sT + 1, sT, sK0))
            S('s_sub_u32 s%d, s%d, 86' % (sT + 2, sT + 1))
            S('s_cmp_ge_u32 s%d, 86' % (sT + 1))
            S('s_cselect_b32 s%d, s%d, s%d' % (sT + 1, sT + 2, sT + 1))
            S('s_lshl_b32 s%d, s%d, 10' % (sT + 1, sT + 1))
            if 4 * tstep + 3 >= 86:
                S('s_cmp_ge_u32 s%d, 86' % sT)
                S('s_cselect_b32 s%d, 0x7000000, s%d' % (sT + 1, sT + 1))
            S('s_add_u32 s%d, s%d, s%d' % (sT + 2, sT + 1, sHA))
            S('s_add_u32 s%d, s%d, s%d' % (sT + 3, sT + 1, sWA))
            S('buffer_load_dwordx4 %s, v%d, s[%d:%d], s%d offen' % (vr(b, 4), vHa, SWS, SWS + 3, sT + 2))
            S('buffer_load_dwordx4 %s, v%d, s[%d:%d], s%d offen' % (vr(b + 4, 4), vHb, SWS, SWS + 3, sT + 2))
            S('buffer_load_dwordx4 %s, v%d, s[%d:%d], s%d offen' % (vr(b + 8, 4), vWa, SWS, SWS + 3, sT + 3))
            S('buffer_load_dwordx4 %s, v%d, s[%d:%d], s%d offen' % (vr(b + 12, 4), vWb, SWS, SWS + 3, sT + 3))
        else:
            u = tstep - NDS
            S('s_add_u32 s%d, s%d, %d' % (sT, sW, 4 * u))
            S('s_lshl_b32 s%d, s%d, 10' % (sT, sT))
            if which in ('all', 'o'):
                S('s_add_u32 s%d, s%d, s%d' % (sT + 2, sT, sOA))
                S('buffer_load_dwordx4 %s, v%d, s[%d:%d], s%d offen sc1' % (vr(b, 4), vOa, SWS, SWS + 3, sT + 2))
                S('buffer_load_dwordx4 %s, v%d, s[%d:%d], s%d offen sc1' % (vr(b + 4, 4), vOb, SWS, SWS + 3, sT + 2))
            if which in ('all', 'w'):
                S('s_add_u32 s%d, s%d, s%d' % (sT + 3, sT, sWO))
                S('buffer_load_dwordx4 %s, v%d, s[%d:%d], s%d offen' % (vr(b + 8, 4), vPa, SWS, SWS + 3, sT + 3))
                S('buffer_load_dwordx4 %s, v%d, s[%d:%d], s%d offen' % (vr(b + 12, 4), vPb, SWS, SWS + 3, sT + 3))

    def step_mfma(S, tstep, accs, first):
        b = BUF[tstep % NB]
        for rm in range(2):
            for cn in range(2):
                a = accs[cn + 2 * rm]
                S('v_mfma_f32_32x32x16_bf16 %s, %s, %s, %s' % (vr(a, 16), vr(b + 8 + 4 * cn, 4), vr(b + 4 * rm, 4),
                                                               '0' if first else vr(a, 16)))

    for tstep in range(6):
        step_loads(S, tstep)

    PH = 88
    for j in range(4):
        S('v_lshl_or_b32 v%d, v%d, 16, v%d' % (PP + 16 + j, RW + 2 * j + 1, RW + 2 * j))
    S('v_bfe_u32 v%d, v%d, 4, 1' % (t[1], vLane))
    S('v_mul_u32_u24 v%d, 0x8000, v%d' % (t[1], t[1]))
    S('v_lshl_or_b32 v%d, v%d, 16, v%d' % (t[1], t[1], t[1]))
    for j in range(4):
        S('v_xor_b32 v%d, v%d, v%d' % (PH + j, PP + 16 + j, t[1]))
    stamp(S, 1)
    for i in range(2):
        T = ACC + 32 * i
        S('v_mfma_f32_32x32x16_bf16 %s, %s, %s, 0' % (vr(T, 16), vr(PH, 4), vr(QF + 4 * i, 4)))
    KVA = 32
    for j in range(8):
        S('v_cvt_pk_bf16_f32 v%d, v%d, v%d' % (KVA + j, PP + 2 * j, PP + 2 * j + 1))
    for i in range(2):
        T = ACC + 32 * i
        N = ACC + 32 * i + 16
        P1, P2 = 40 + 8 * i, 44 + 8 * i
        softmax8(S, T, P1, 56)
        softmax8(S, T + 8, P2, 56)
        S('v_mfma_f32_32x32x16_bf16 %s, %s, %s, 0' % (vr(N, 16), vr(KVA, 4), vr(P1, 4)))
        S('v_mfma_f32_32x32x16_bf16 %s, %s, %s, %s' % (vr(N, 16), vr(KVA + 4, 4), vr(P2, 4), vr(N, 16)))
    for i in range(2):
        N = ACC + 32 * i + 16
        S('v_add_f32 v%d, %s, v%d' % (60, f32(1e-6), N + 8))
        S('v_rcp_f32 v%d, v%d' % (60, 60))
        for r in range(8):
            S('v_mul_f32 v%d, v%d, v%d' % (N + r, N + r, 60))
        for j in range(4):
            S('v_cvt_pk_bf16_f32 v%d, v%d, v%d' % (64 + 4 * i + j, N + 2 * j, N + 2 * j + 1))
        S('s_lshl_b32 s%d, s%d, 3' % (sT, sXC))
        S('s_lshl_b32 s%d, s%d, 1' % (sT + 1, sW))
        S('s_add_u32 s%d, s%d, s%d' % (sT, sT, sT + 1))
        S('s_add_u32 s%d, s%d, %d' % (sT, sT, i))
        S('s_lshl_b32 s%d, s%d, 5' % (sT, sT))
        S('s_add_u32 s%d, s%d, s%d' % (sT, sT, sI))
        S('s_lshl_b32 s%d, s%d, 10' % (sT, sT))
        S('s_add_u32 s%d, s%d, %d' % (sT, sT, O_OFF))
        S('buffer_store_dwordx4 %s, v%d, s[%d:%d], s%d offen sc1' % (vr(64 + 4 * i, 4), vL16, SWS, SWS + 3, sT), tag='ost')
    stamp(S, 2)
    S.wait_vm('ost')
    S('s_barrier')
    stamp(S, 3)
    S('s_cmp_eq_u32 s%d, 0' % sW)
    S('s_cbranch_scc0 K2_NOSIG')
    S('s_lshl_b32 s%d, s%d, 5' % (sT, sXC), opt=True)
    S('v_mov_b32 v%d, s%d' % (t[0], sT), opt=True)
    S('v_mov_b32 v%d, 1' % t[1], opt=True)
    S('s_mov_b64 exec, 1', opt=True)
    S('global_atomic_add v%d, v%d, s[22:23] sc1' % (t[0], t[1]), opt=True, untracked=True)
    S('s_mov_b64 exec, -1', opt=True)
    S('K2_NOSIG:')

    for tstep in range(6, NB):
        step_loads(S, tstep)
    accD = [ACC, ACC + 16, ACC + 32, ACC + 48]
    for tstep in range(NDS):
        step_mfma(S, tstep, accD, tstep == 0)
        nx = tstep + NB
        if nx < NDS:
            step_loads(S, nx)
        elif nx < NDS + NSS:
            step_loads(S, nx, which='w')

    def red_write(S, accs):
        for a in range(1, 4):
            S('s_xor_b32 s%d, s%d, %d' % (sT, sW, a))
            S('s_mul_i32 s%d, s%d, 12288' % (sT, sT))
            S('s_add_u32 s%d, s%d, %d' % (sT, sT, RED + (a - 1) * 4096))
            S('v_add_u32 v%d, s%d, v%d' % (t[a - 1], sT, vL16))
            for q in range(4):
                S('ds_write_b128 v%d, %s offset:%d' % (t[a - 1], vr(accs[a] + 4 * q, 4), 1024 * q))

    def red_read(S, dst, tmp):
        S('s_mul_i32 s%d, s%d, 12288' % (sT, sW))
        S('v_add_u32 v%d, s%d, v%d' % (t[3], sT, vL16))
        for a in range(3):
            for q in range(4):
                S('ds_read_b128 %s, v%d offset:%d' % (vr(tmp[a] + 4 * q, 4), t[3], RED + 4096 * a + 1024 * q))
        for a in range(3):
            for r in range(16):
                S('v_add_f32 v%d, v%d, v%d' % (dst + r, dst + r, tmp[a] + r))

    stamp(S, 4)
    red_write(S, accD)
    S.wait_lg0()
    S('s_barrier')
    stamp(S, 5)
    S.wait_vm0()
    S('s_lshl_b32 s%d, s%d, 5' % (sT + 4, sXC))
    S('v_mov_b32 v%d, s%d' % (t[4], sT + 4))
    S('s_mov_b32 s%d, 0' % (sT + 5))
    S.fence()
    S('K2_POLL:')
    S('global_load_dword v%d, v%d, s[22:23] sc1' % (t[3], t[4]), untracked=True)
    S('s_waitcnt vmcnt(0)')
    S('v_readfirstlane_b32 s%d, v%d' % (sT + 6, t[3]))
    S('s_add_u32 s%d, s%d, 1' % (sT + 5, sT + 5))
    S('s_cmp_ge_u32 s%d, 32' % (sT + 6))
    S('s_cbranch_scc1 K2_POLLED')
    S('s_cmp_ge_u32 s%d, 20000' % (sT + 5))
    S('s_cbranch_scc1 K2_POLLED')
    S('s_sleep 1')
    S('s_branch K2_POLL')
    S('K2_POLLED:')
    stamp(S, 6)
    for u in range(NSS):
        step_loads(S, NDS + u, which='o')
    XR = BUF[10] + 8
    red_read(S, ACC, [BUF[8], BUF[9], BUF[10]])
    S.wait_lg0()
    S('s_barrier')
    S('v_and_b32 v%d, 31, v%d' % (t[0], vLane))
    S('s_lshr_b32 s%d, s%d, 1' % (sT, sW))
    S('s_lshl_b32 s%d, s%d, 5' % (sT, sT))
    S('s_lshl_b32 s%d, s%d, 6' % (sT + 1, sRB))
    S('s_add_u32 s%d, s%d, s%d' % (sT, sT, sT + 1))
    S('v_add_u32 v%d, s%d, v%d' % (t[0], sT, t[0]))
    S('v_lshlrev_b32 v%d, 10, v%d' % (t[0], t[0]))
    S('v_lshrrev_b32 v%d, 5, v%d' % (t[1], vLane))
    S('v_lshl_add_u32 v%d, v%d, 5, v%d' % (t[0], t[1], t[0]))
    S('s_and_b32 s%d, s%d, 1' % (sT, sW))
    S('s_lshl_b32 s%d, s%d, 6' % (sT, sT))
    S('s_lshl_b32 s%d, s%d, 7' % (sT + 1, sCT))
    S('s_add_u32 s%d, s%d, s%d' % (sT, sT, sT + 1))
    S('v_add_u32 v%d, s%d, v%d' % (vHa, sT, t[0]))
    XR = BUF[9]
    S('buffer_load_dwordx4 %s, v%d, s[%d:%d], 0 offen' % (vr(XR, 4), vHa, SX, SX + 3))
    S('buffer_load_dwordx4 %s, v%d, s[%d:%d], 0 offen offset:16' % (vr(XR + 4, 4), vHa, SX, SX + 3))
    accS = [BUF[8], ACC + 16, ACC + 32, ACC + 48]
    for u in range(NSS):
        step_mfma(S, NDS + u, accS, u == 0)
    stamp(S, 7)
    red_write(S, accS)
    S.wait_lg0()
    S('s_barrier')
    G = BUF[10]
    for r in range(16):
        S('v_mul_f32 v%d, %s, v%d' % (G + r, f32(-LOG2E), ACC + r))
    for r in range(16):
        S('v_exp_f32 v%d, v%d' % (G + r, G + r))
    for r in range(16):
        S('v_add_f32 v%d, 1.0, v%d' % (G + r, G + r))
    for r in range(16):
        S('v_rcp_f32 v%d, v%d' % (G + r, G + r))
    for r in range(16):
        S('v_mul_f32 v%d, v%d, v%d' % (G + r, G + r, ACC + r))
    red_read(S, accS[0], [BUF[0], BUF[1], BUF[2]])
    O = BUF[3]
    for j in range(8):
        S('v_lshlrev_b32 v%d, 16, v%d' % (O + 2 * j, XR + j))
        S('v_and_b32 v%d, 0xffff0000, v%d' % (O + 2 * j + 1, XR + j))
    for r in range(16):
        S('v_fma_f32 v%d, v%d, v%d, v%d' % (O + r, accS[0] + r, G + r, O + r))
    P = BUF[4]
    for j in range(8):
        S('v_cvt_pk_bf16_f32 v%d, v%d, v%d' % (P + j, O + 2 * j, O + 2 * j + 1))
    S('buffer_store_dwordx4 %s, v%d, s[%d:%d], 0 offen' % (vr(P, 4), vHa, SO, SO + 3))
    S('buffer_store_dwordx4 %s, v%d, s[%d:%d], 0 offen offset:16' % (vr(P + 4, 4), vHa, SO, SO + 3))
    if STAMP:
        S('s_waitcnt vmcnt(0)')
    stamp(S, 8)
    stamp_flush(S, 1, 9, SWS, sW, sT, BUF[5], 'K2_SF')
    S('K2_END:')
    S('s_endpgm')
    return finalize(S.ins, verbose=True)


def kernel_text(label, lines, nvgpr, nsgpr=102):
    out = []
    out.append('.globl %s' % label)
    out.append('.p2align 8')
    out.append('.type %s,@function' % label)
    out.append('%s:' % label)
    out += lines
    return out


def kd_text(label, nvgpr, nsgpr=102):
    return ['.amdhsa_kernel %s' % label,
            '  .amdhsa_next_free_vgpr %d' % nvgpr,
            '  .amdhsa_next_free_sgpr %d' % nsgpr,
            '  .amdhsa_accum_offset %d' % ((nvgpr + 3) // 4 * 4),
            '  .amdhsa_group_segment_fixed_size 0',
            '  .amdhsa_kernarg_size 88',
            '  .amdhsa_user_sgpr_count 2',
            '  .amdhsa_user_sgpr_kernarg_segment_ptr 1',
            '  .amdhsa_system_sgpr_workgroup_id_x 1',
            '.end_amdhsa_kernel']


HEADER = """; Kernarg layout for this problem (88 bytes, ptrs only, base s[0:1]):
; k1: folded-LN GEMM (QKV, gate/up) + hedgehog K-side + GEGLU epilogues ; k2: o production, down/out projections, final gate
"""


def build(path, only=None):
    k1 = gen_k1()
    k2 = gen_k2()
    out = HEADER.rstrip('\n').split('\n')
    if only in (None, 'k1'):
        out.append('; @launch kernel=hh_k1_kernel grid=(256,1,1) block=(512,1,1) lds=163840')
    if only in (None, 'k2'):
        out.append('; @launch kernel=hh_k2_kernel grid=(256,1,1) block=(256,1,1) lds=49152')
    out.append('.amdgcn_target "amdgcn-amd-amdhsa--gfx950"')
    out.append('.text')
    out += kernel_text('hh_k1_kernel', k1, 256)
    out += kernel_text('hh_k2_kernel', k2, 256)
    out.append('.section .rodata,"a"')
    out.append('.p2align 6')
    out += kd_text('hh_k1_kernel', 256)
    out.append('.p2align 6')
    out += kd_text('hh_k2_kernel', 256)
    open(path, 'w').write('\n'.join(out) + '\n')


if __name__ == '__main__':
    if os.environ.get('STAMP'):
        STAMP = True
    dst = sys.argv[1] if len(sys.argv) > 1 else 'cdna_kernels/%s.s' % NAME
    build(dst)
```
